```python
import torch

def _softmax(x, axis=-1):
    return torch.softmax(x, dim=axis)
def _gelu(x):
    return torch.nn.functional.gelu(x, approximate="tanh")
def _silu(x):
    return torch.nn.functional.silu(x)
def _sigmoid(x):
    return torch.sigmoid(x)
def _layernorm(x, axis=-1, eps=1e-5):
    m = x.mean(dim=axis, keepdim=True)
    v = x.var(dim=axis, keepdim=True, unbiased=False)
    return (x - m) / torch.sqrt(v + eps)
def _scatter_add(tgt, idx, src, axis=0):
    return tgt.clone().index_add_(axis, idx, src)
def _segment_sum(src, seg, n):
    out = torch.zeros((n,) + src.shape[1:], dtype=src.dtype)
    return out.index_add_(0, seg, src)
def _pad(x, pw):
    flat = tuple(v for pair in reversed(pw) for v in pair)
    return torch.nn.functional.pad(x, flat)

kernel_name = 'standalone__mha_block_cached__near_ridge'

def setup_inputs():

    _w = (lambda a: (lambda t: t.to(torch.bfloat16) if t.is_floating_point() else t)(torch.as_tensor(a)))
    B, Sq, D = 8, 144, 448
    H, Sk, Dh = 16, 512, 256
    return {
        "x": _w((lambda *s: torch.randn(*s, dtype=torch.bfloat16) * 0.8)(B, Sq, D)),
        "k_cache": _w((lambda *s: torch.randn(*s, dtype=torch.bfloat16) * 0.8)(B, H, Sk, Dh)),
        "v_cache": _w((lambda *s: torch.randn(*s, dtype=torch.bfloat16) * 0.05)(B, H, Sk, Dh)),
        "wq": _w((lambda *s: torch.randn(*s, dtype=torch.bfloat16) * 0.8)(D, H * Dh) * (D ** -0.5)),
        "wo": _w((lambda *s: torch.randn(*s, dtype=torch.bfloat16) * 0.05)(H * Dh, D) * ((H * Dh) ** -0.5)),
    }

def reference(x, k_cache, v_cache, wq, wo):
    B, Sq, D = x.shape
    H, Dh = 16, 256
    q = (lambda x, *d: x.permute(*d))((x @ wq).reshape(B, Sq, H, Dh), 0, 2, 1, 3)
    scores = torch.einsum("bhqd,bhkd->bhqk", q, k_cache) * (Dh ** -0.5)
    p = _softmax(scores, axis=-1)
    o = torch.einsum("bhqk,bhkd->bhqd", p, v_cache)
    return (lambda x, *d: x.permute(*d))(o, 0, 2, 1, 3).reshape(B, Sq, H * Dh) @ wo
```

```python
NAME = "standalone__mha_block_cached__near_ridge"

HEADER_COMMENT = """; Kernarg layout for this problem (64 bytes, ptrs only, base s[0:1]):
"""


class Asm:
    def __init__(self):
        self.lines = []

    def __call__(self, s=""):
        for l in s.split("\n"):
            self.lines.append("    " + l.strip() if l.strip() and not l.strip().endswith(":") else l.strip())

    def label(self, name):
        self.lines.append(name + ":")

    def text(self):
        return "\n".join(self.lines) + "\n"


def kernel_text(label, body, vgpr, sgpr, accum):
    t = f".globl {label}\n.p2align 8\n.type {label},@function\n{label}:\n"
    t += body
    return t


def kd_text(label, vgpr, sgpr, accum):
    return (f".amdhsa_kernel {label}\n"
            f"  .amdhsa_next_free_vgpr {vgpr}\n"
            f"  .amdhsa_next_free_sgpr {sgpr}\n"
            f"  .amdhsa_accum_offset {accum}\n"
            f"  .amdhsa_group_segment_fixed_size 0\n"
            f"  .amdhsa_kernarg_size 64\n"
            f"  .amdhsa_user_sgpr_count 2\n"
            f"  .amdhsa_user_sgpr_kernarg_segment_ptr 1\n"
            f"  .amdhsa_system_sgpr_workgroup_id_x 1\n"
            f"  .amdhsa_float_denorm_mode_32 3\n"
            f".end_amdhsa_kernel\n")


def build_file(kernels, launches, extra_comment=""):
    t = HEADER_COMMENT
    if len(launches) == 1 and launches[0][0] == NAME + "_kernel":
        _, g, b, lds = launches[0]
        t += f"; @launch grid=({g},1,1) block=({b},1,1) lds={lds}\n"
    else:
        for (label, g, b, lds) in launches:
            t += f"; @launch kernel={label} grid=({g},1,1) block=({b},1,1) lds={lds}\n"
    t += extra_comment
    t += '.amdgcn_target "amdgcn-amd-amdhsa--gfx950"\n.text\n'
    for (label, body, vgpr, sgpr, accum) in kernels:
        t += kernel_text(label, body, vgpr, sgpr, accum)
    t += '.section .rodata,"a"\n'
    for (label, body, vgpr, sgpr, accum) in kernels:
        t += ".p2align 6\n" + kd_text(label, vgpr, sgpr, accum)
    return t
```

```python
import sys
from asmlib import *

Q_OFF = 0
O_OFF = 16 << 20


def gemm_kernel(tag, a_slot, a_off, a_bytes, lda, b_slot, b_bytes, ldb, c_slot, c_off, c_bytes, ldc, M, N, K):
    a = Asm()
    ntn = N // 16
    ntiles = (M // 16) * ntn
    nwg = ntiles // 4
    magic = (1 << 32) // ntn + 1
    a(f"""
    s_cmp_ge_u32 s2, {nwg}
    s_cbranch_scc1 L_end_{tag}
    s_load_dwordx2 s[4:5], s[0:1], {a_slot*8}
    s_load_dwordx2 s[6:7], s[0:1], {b_slot*8}
    s_load_dwordx2 s[8:9], s[0:1], {c_slot*8}
    v_lshrrev_b32 v1, 6, v0
    v_and_b32 v0, 63, v0
    s_nop 0
    v_readfirstlane_b32 s3, v1
    s_lshl_b32 s10, s2, 2
    s_add_u32 s10, s10, s3
    s_mov_b32 s11, {magic}
    s_mul_hi_u32 s12, s10, s11
    s_mul_i32 s13, s12, {ntn}
    s_sub_u32 s13, s10, s13
    s_waitcnt lgkmcnt(0)
    s_add_u32 s16, s4, {a_off}
    s_addc_u32 s17, s5, 0
    s_mov_b32 s18, {a_bytes}
    s_mov_b32 s19, 0x20000
    s_mov_b32 s20, s6
    s_mov_b32 s21, s7
    s_mov_b32 s22, {b_bytes}
    s_mov_b32 s23, 0x20000
    s_add_u32 s24, s8, {c_off}
    s_addc_u32 s25, s9, 0
    s_mov_b32 s26, {c_bytes}
    s_mov_b32 s27, 0x20000
    v_and_b32 v2, 15, v0
    v_lshrrev_b32 v3, 4, v0
    s_lshl_b32 s14, s12, 4
    v_add_u32 v4, s14, v2
    s_mov_b32 s15, {lda}
    v_mul_lo_u32 v4, v4, s15
    v_lshlrev_b32 v5, 4, v3
    v_add_u32 v4, v4, v5
    s_lshl_b32 s14, s13, 4
    v_add_u32 v5, s14, v2
    v_lshlrev_b32 v5, 1, v5
    s_mov_b32 s15, {ldb*8}
    v_mul_lo_u32 v6, v3, s15
    v_add_u32 v5, v5, v6
    v_mov_b32 v16, 0
    v_mov_b32 v17, 0
    v_mov_b32 v18, 0
    v_mov_b32 v19, 0
    s_mov_b32 s28, 0
    s_mov_b32 s29, 0
    s_mov_b32 s30, 0
    """)
    a.label(f"L_loop_{tag}")
    a("buffer_load_dwordx4 v[8:11], v4, s[16:19], s29 offen")
    for j in range(8):
        a(f"s_add_u32 s31, s30, {j*ldb}")
        a(f"buffer_load_ushort v{22+j}, v5, s[20:23], s31 offen")
    a("s_waitcnt vmcnt(0)")
    for j in range(4):
        a(f"v_lshl_or_b32 v{12+j}, v{23+2*j}, 16, v{22+2*j}")
    a(f"""
    s_nop 1
    v_mfma_f32_16x16x32_bf16 v[16:19], v[8:11], v[12:15], v[16:19]
    s_add_u32 s29, s29, 64
    s_add_u32 s30, s30, {32*ldb}
    s_add_u32 s28, s28, 1
    s_cmp_lt_u32 s28, {K//32}
    s_cbranch_scc1 L_loop_{tag}
    s_nop 7
    s_lshl_b32 s14, s12, 4
    v_lshlrev_b32 v6, 2, v3
    v_add_u32 v6, s14, v6
    s_mov_b32 s15, {ldc}
    v_mul_lo_u32 v6, v6, s15
    s_lshl_b32 s14, s13, 4
    v_add_u32 v7, s14, v2
    v_lshlrev_b32 v7, 1, v7
    v_add_u32 v6, v6, v7
    v_cvt_pk_bf16_f32 v20, v16, v17
    v_cvt_pk_bf16_f32 v21, v18, v19
    s_mov_b32 s14, {ldc}
    s_mov_b32 s15, {2*ldc}
    s_mov_b32 s28, {3*ldc}
    buffer_store_short v20, v6, s[24:27], 0 offen
    buffer_store_short_d16_hi v20, v6, s[24:27], s14 offen
    buffer_store_short v21, v6, s[24:27], s15 offen
    buffer_store_short_d16_hi v21, v6, s[24:27], s28 offen
    s_waitcnt vmcnt(0)
    """)
    a.label(f"L_end_{tag}")
    a("s_endpgm")
    return a.text(), nwg


def attn_kernel():
    a = Asm()
    a(f"""
    s_cmp_ge_u32 s2, 1152
    s_cbranch_scc1 L_end_attn
    s_load_dwordx2 s[4:5], s[0:1], 8
    s_load_dwordx2 s[6:7], s[0:1], 16
    s_load_dwordx2 s[8:9], s[0:1], 56
    s_mov_b32 s11, {(1<<32)//9+1}
    s_mul_hi_u32 s12, s2, s11      ; bh
    s_mul_i32 s13, s12, 9
    s_sub_u32 s13, s2, s13         ; qt
    s_lshr_b32 s14, s12, 4         ; b
    s_and_b32 s15, s12, 15         ; h
    s_waitcnt lgkmcnt(0)
    s_lshl_b32 s10, s12, 18
    s_add_u32 s16, s4, s10
    s_addc_u32 s17, s5, 0
    s_mov_b32 s18, 262144
    s_mov_b32 s19, 0x20000
    s_add_u32 s20, s6, s10
    s_addc_u32 s21, s7, 0
    s_mov_b32 s22, 262144
    s_mov_b32 s23, 0x20000
    s_mul_i32 s10, s14, 144
    s_lshl_b32 s11, s13, 4
    s_add_u32 s10, s10, s11
    s_lshl_b32 s10, s10, 13
    s_lshl_b32 s11, s15, 9
    s_add_u32 s10, s10, s11
    s_add_u32 s24, s8, s10
    s_addc_u32 s25, s9, 0
    s_mov_b32 s26, {16*8192}
    s_mov_b32 s27, 0x20000
    s_add_u32 s10, s10, {O_OFF}
    s_add_u32 s28, s8, s10
    s_addc_u32 s29, s9, 0
    s_mov_b32 s30, {16*8192}
    s_mov_b32 s31, 0x20000
    v_and_b32 v2, 15, v0
    v_lshrrev_b32 v3, 4, v0
    v_lshlrev_b32 v4, 13, v2
    v_lshlrev_b32 v5, 4, v3
    v_add_u32 v4, v4, v5           ; Q voffset
    v_lshlrev_b32 v6, 9, v2
    v_add_u32 v6, v6, v5           ; K voffset
    """)
    for s in range(8):
        a(f"buffer_load_dwordx4 v[{16+4*s}:{19+4*s}], v4, s[24:27], 0 offen offset:{64*s}")
    for t in range(32):
        a(f"s_mov_b32 s10, {t*16*512}")
        for s in range(8):
            a(f"buffer_load_dwordx4 v[{192+4*s}:{195+4*s}], v6, s[16:19], s10 offen offset:{64*s}")
        a("s_waitcnt vmcnt(0)")
        for s in range(8):
            c = "0" if s == 0 else f"v[{64+4*t}:{67+4*t}]"
            a(f"v_mfma_f32_16x16x32_bf16 v[{64+4*t}:{67+4*t}], v[{192+4*s}:{195+4*s}], v[{16+4*s}:{19+4*s}], {c}")
    a("s_nop 7")
    a("v_mov_b32 v8, v64")
    for r in range(65, 192):
        a(f"v_max_f32 v8, v8, v{r}")
    a("""
    v_xor_b32 v9, 16, v0
    v_lshlrev_b32 v9, 2, v9
    v_xor_b32 v10, 32, v0
    v_lshlrev_b32 v10, 2, v10
    ds_bpermute_b32 v11, v9, v8
    s_waitcnt lgkmcnt(0)
    v_max_f32 v8, v8, v11
    ds_bpermute_b32 v11, v10, v8
    s_waitcnt lgkmcnt(0)
    v_max_f32 v8, v8, v11
    s_mov_b32 s10, 0x3db8aa3b   ; log2(e)/16
    v_mul_f32 v8, s10, v8
    v_mov_b32 v12, 0
    """)
    for r in range(64, 192):
        a(f"v_fma_f32 v{r}, v{r}, s10, -v8")
        a(f"v_exp_f32 v{r}, v{r}")
        a("s_nop 0")
        a(f"v_add_f32 v12, v12, v{r}")
    a("""
    ds_bpermute_b32 v11, v9, v12
    s_waitcnt lgkmcnt(0)
    v_add_f32 v12, v12, v11
    ds_bpermute_b32 v11, v10, v12
    s_waitcnt lgkmcnt(0)
    v_add_f32 v12, v12, v11
    v_rcp_f32 v12, v12
    """)
    for s in range(16):
        for hh in range(2):
            t = 2 * s + hh
            a(f"v_cvt_pk_bf16_f32 v{192+4*s+2*hh}, v{64+4*t}, v{65+4*t}")
            a(f"v_cvt_pk_bf16_f32 v{193+4*s+2*hh}, v{66+4*t}, v{67+4*t}")
    a("""
    v_lshlrev_b32 v13, 11, v3
    v_lshlrev_b32 v14, 1, v2
    v_add_u32 v13, v13, v14
    v_lshlrev_b32 v15, 13, v2
    v_lshlrev_b32 v14, 3, v3
    v_add_u32 v15, v15, v14      ; O voffset = q*8192 + 4g*2
    s_mov_b32 s12, 0
    """)
    a.label("L_pv")
    for s in range(16):
        for j in range(8):
            key = 32 * s + (j if j < 4 else 16 + j - 4)
            a(f"s_add_u32 s10, s12, {key*512}")
            a(f"buffer_load_ushort v{128+8*(s%4)+j}, v13, s[20:23], s10 offen")
        if s % 4 == 3:
            a("s_waitcnt vmcnt(0)")
            for ss in range(s - 3, s + 1):
                for j in range(4):
                    a(f"v_lshl_or_b32 v{64+4*ss+j}, v{128+8*(ss%4)+2*j+1}, 16, v{128+8*(ss%4)+2*j}")
    a("s_nop 1")
    for s in range(16):
        c = "0" if s == 0 else "v[16:19]"
        a(f"v_mfma_f32_16x16x32_bf16 v[16:19], v[{64+4*s}:{67+4*s}], v[{192+4*s}:{195+4*s}], {c}")
    a("""
    s_nop 7
    v_mul_f32 v16, v16, v12
    v_mul_f32 v17, v17, v12
    v_mul_f32 v18, v18, v12
    v_mul_f32 v19, v19, v12
    v_cvt_pk_bf16_f32 v20, v16, v17
    v_cvt_pk_bf16_f32 v21, v18, v19
    buffer_store_dwordx2 v[20:21], v15, s[28:31], s12 offen
    s_add_u32 s12, s12, 32
    s_cmp_lt_u32 s12, 512
    s_cbranch_scc1 L_pv
    s_waitcnt vmcnt(0)
    """)
    a.label("L_end_attn")
    a("s_endpgm")
    return a.text()


def parts():
    k1, n1 = gemm_kernel("q", 0, 0, 1152 * 896, 896, 3, 448 * 8192, 8192, 7, Q_OFF, 1152 * 8192, 8192, 1152, 4096, 448)
    k2 = attn_kernel()
    k3, n3 = gemm_kernel("o", 7, O_OFF, 1152 * 8192, 8192, 4, 4096 * 896, 896, 5, 0, 1152 * 896, 896, 1152, 448, 4096)
    kernels = [("qproj_kernel", k1, 32, 48, 32), ("attn_kernel", k2, 256, 48, 256), ("oproj_kernel", k3, 32, 48, 32)]
    launches = [("qproj_kernel", n1, 256, 0), ("attn_kernel", 1152, 64, 0), ("oproj_kernel", n3, 256, 0)]
    return kernels, launches


if __name__ == "__main__":
    k, l = parts()
    open(sys.argv[1], "w").write(build_file(k, l))
```

```python
import re

REG_RE = re.compile(r"\b([vas])\[(\d+):(\d+)\]|\b([vas])(\d+)\b|\b(vcc|exec|m0)\b")
TRANS = ("v_exp_f32", "v_log_f32", "v_rcp_f32", "v_rsq_f32", "v_sqrt_f32", "v_sin_f32", "v_cos_f32")


def regs_of(s):
    out = []
    for m in REG_RE.finditer(s):
        if m.group(1):
            out += [m.group(1) + str(i) for i in range(int(m.group(2)), int(m.group(3)) + 1)]
        elif m.group(4):
            out.append(m.group(4) + m.group(5))
        else:
            out.append(m.group(6))
    return out


class I:
    __slots__ = ("text", "op", "kind", "rd", "wr", "tag", "srcc", "pseudo")

    def __init__(self, text, tag=None, pseudo=None):
        self.text = text.strip()
        self.tag = tag
        self.pseudo = pseudo
        self.rd = set(); self.wr = set(); self.srcc = set()
        if pseudo:
            self.op = pseudo; self.kind = "pseudo"
            return
        body = self.text.split(";")[0].strip()
        if body.endswith(":") or not body:
            self.op = "label"; self.kind = "label"
            return
        parts = body.split(None, 1)
        op = parts[0]; self.op = op
        ops = [o.strip() for o in parts[1].split(",")] if len(parts) > 1 else []
        R = lambda lst: set(r for o in lst for r in regs_of(o))
        if op.startswith("v_mfma"):
            self.kind = "mfma"; self.wr = R(ops[:1]); self.rd = R(ops[1:]); self.srcc = R(ops[3:4])
        elif op.startswith("ds_read") or op.startswith("ds_bpermute"):
            self.kind = "ds"; self.wr = R(ops[:1]); self.rd = R(ops[1:])
        elif op.startswith("ds_"):
            self.kind = "ds"; self.rd = R(ops)
        elif op.startswith("buffer_load") or op.startswith("global_load"):
            self.kind = "vmem"
            if re.search(r"\blds\b", body):
                self.rd = R(ops) | {"m0"}
            else:
                self.wr = R(ops[:1]); self.rd = R(ops[1:])
        elif op.startswith("buffer_atomic"):
            self.kind = "vmem"; self.rd = R(ops)
            if re.search(r"\bsc0\b", body):
                self.wr = R(ops[:1])
        elif op.startswith("buffer_") or op.startswith("global_"):
            self.kind = "vmem"; self.rd = R(ops)
        elif op.startswith("v_permlane"):
            self.kind = "valu"; self.wr = R(ops); self.rd = R(ops)
        elif op.startswith("v_"):
            self.kind = "valu"; self.wr = R(ops[:1]); self.rd = R(ops[1:])
            if op.startswith("v_fmac") or op.startswith("v_writelane"):
                self.rd |= self.wr
            if op.startswith("v_cndmask") and len(ops) == 3:
                self.rd.add("vcc")
        elif op.startswith("s_load") or op.startswith("s_mem"):
            self.kind = "smem"; self.wr = R(ops[:1]); self.rd = R(ops[1:])
        elif op in ("s_waitcnt", "s_barrier", "s_nop", "s_endpgm", "s_sleep", "s_setprio") or op.startswith("s_cbranch") or op == "s_branch":
            self.kind = "ctl"
        elif op.startswith("s_cmp") or op.startswith("s_bitcmp"):
            self.kind = "salu"; self.rd = R(ops)
        elif op.startswith("s_"):
            self.kind = "salu"; self.wr = R(ops[:1]); self.rd = R(ops[1:])
            if "saveexec" in op:
                self.wr.add("exec")
        else:
            raise ValueError("unknown op: " + text)


def L(text, tag=None):
    return [I(t, tag) for t in text.split("\n") if t.split(";")[0].strip()]


def wait_vm(tag):
    return I("", tag, "wait_vm")


def wait_ds(tag=None):
    return I("", tag, "wait_ds")


def flat(x):
    out = []
    for e in x:
        if isinstance(e, list):
            out += flat(e)
        else:
            out.append(e)
    return out


def merge(main, side, lo=0.0, hi=1.0):
    n = len(main)
    if n == 0:
        return [list(side)]
    out = [[m] for m in main]
    for j, s in enumerate(side):
        pos = min(n - 1, int(lo * n + (hi - lo) * n * j / len(side)))
        out[pos].append(s)
    return out


def finalize(prog, stats=None):
    out = []
    dsq = []
    vmq = []
    seen_vm_tags = set(); seen_ds_tags = set()
    t = 0
    last_mfma_wr = {}
    last_mfma_c = {}
    last_valu_wr = {}
    last_trans_wr = {}
    last_salu_m0 = -100
    last_store_rd = {}
    last_valu_exec = -100
    nnop = 0

    def emit(text):
        nonlocal t
        out.append("    " + text)
        t += 1

    def do_wait(vm=None, ds=None):
        s = []
        if vm is not None and len(vmq) > vm:
            n = min(vm, 63)
            s.append(f"vmcnt({n})"); del vmq[:len(vmq) - n]
        if ds is not None and len(dsq) > ds:
            n = min(ds, 15)
            s.append(f"lgkmcnt({n})"); del dsq[:len(dsq) - n]
        if s:
            emit("s_waitcnt " + " ".join(s))

    def need_after(q, pred):
        last = -1
        for i, o in enumerate(q):
            if pred(o):
                last = i
        return None if last < 0 else len(q) - 1 - last

    for ins in flat(prog):
        if ins.kind == "label":
            out.append(ins.text); continue
        if ins.kind == "pseudo":
            if ins.op == "wait_vm":
                if ins.tag is None:
                    do_wait(vm=0)
                else:
                    assert ins.tag in seen_vm_tags, f"wait_vm on unissued tag {ins.tag}"
                    do_wait(vm=need_after(vmq, lambda o: o.tag == ins.tag))
            elif ins.op == "wait_ds":
                if ins.tag is None:
                    do_wait(ds=0)
                else:
                    assert ins.tag in seen_ds_tags, f"wait_ds on unissued tag {ins.tag}"
                    do_wait(ds=need_after(dsq, lambda o: o.tag == ins.tag))
            continue
        touched = ins.rd | ins.wr
        do_wait(vm=need_after(vmq, lambda o: o.wr & touched), ds=need_after(dsq, lambda o: o.wr & touched))
        need = t
        def req(t0, ws):
            nonlocal need
            need = max(need, t0 + 1 + ws)
        if ins.kind == "mfma":
            D = frozenset(ins.wr)
            for r in ins.rd:
                if r in last_valu_wr: req(last_valu_wr[r], 2)
                if r in last_mfma_wr:
                    t0, D0 = last_mfma_wr[r]
                    if r in ins.srcc and frozenset(ins.srcc) == D0:
                        pass
                    elif r in ins.srcc:
                        req(t0, 6)
                    else:
                        req(t0, 8)
            for r in ins.wr:
                if r in last_mfma_wr and r not in ins.srcc:
                    t0, D0 = last_mfma_wr[r]
                    req(t0, 6)
            req(last_valu_exec, 4)
        else:
            if ins.kind in ("valu", "ds", "vmem"):
                for r in touched:
                    if r in last_mfma_wr: req(last_mfma_wr[r][0], 8)
            if ins.kind == "valu":
                for r in ins.wr:
                    if r in last_mfma_c: req(last_mfma_c[r], 3)
                    if r in last_store_rd: req(last_store_rd[r], 2)
                for r in ins.rd:
                    if r in last_trans_wr and ins.op not in TRANS: req(last_trans_wr[r], 1)
                    if r in last_valu_wr:
                        if ins.op.startswith("v_permlane") or "dpp" in ins.text or "row_" in ins.text: req(last_valu_wr[r], 2)
                        if ins.op.startswith("v_readfirstlane") or ins.op.startswith("v_readlane"): req(last_valu_wr[r], 1)
                        if r[0] == "s" or r == "vcc": req(last_valu_wr[r], 2)
            if ins.kind in ("ds", "vmem"):
                for r in ins.rd:
                    if r in last_trans_wr: req(last_trans_wr[r], 1)
                for r in ins.wr:
                    if r in last_store_rd: req(last_store_rd[r], 1)
            if ins.kind == "vmem":
                for r in ins.rd:
                    if r[0] == "s" and r in last_valu_wr: req(last_valu_wr[r], 5)
                if "m0" in ins.rd: req(last_salu_m0, 1)
            if ins.kind in ("salu", "smem"):
                for r in ins.rd:
                    if r in last_valu_wr: req(last_valu_wr[r], 2)
        while t < need:
            k = min(need - t, 16)
            out.append(f"    s_nop {k-1}"); t += k; nnop += k
        tt = t
        if ins.op == "s_nop":
            out.append("    " + ins.text); t += int(ins.text.split()[1]) + 1
        else:
            emit(ins.text)
        if ins.op == "s_waitcnt":
            m = re.search(r"vmcnt\((\d+)\)", ins.text)
            if m and len(vmq) > int(m.group(1)): del vmq[:len(vmq) - int(m.group(1))]
            m = re.search(r"lgkmcnt\((\d+)\)", ins.text)
            if m and len(dsq) > int(m.group(1)): del dsq[:len(dsq) - int(m.group(1))]
        for r in ins.wr:
            last_mfma_wr.pop(r, None); last_valu_wr.pop(r, None); last_trans_wr.pop(r, None)
        if ins.kind == "mfma":
            for r in ins.wr: last_mfma_wr[r] = (tt, frozenset(ins.wr))
            for r in ins.srcc: last_mfma_c[r] = tt
        elif ins.kind == "valu":
            for r in ins.wr:
                last_valu_wr[r] = tt
                if ins.op in TRANS: last_trans_wr[r] = tt
            if "exec" in ins.wr: last_valu_exec = tt
        elif ins.kind == "salu":
            if "m0" in ins.wr: last_salu_m0 = tt
        elif ins.kind == "ds":
            dsq.append(ins); seen_ds_tags.add(ins.tag)
        elif ins.kind == "vmem":
            vmq.append(ins); seen_vm_tags.add(ins.tag)
            if "store" in ins.op and ("x4" in ins.op or "x3" in ins.op):
                for r in ins.rd: last_store_rd[r] = tt
    if stats is not None:
        stats["nop_states"] = nnop
        stats["ninstr"] = len(out)
    return "\n".join(out) + "\n"
```

```python
import sys
from asmlib import *
from ir import *

STAMP_OFF = 200 << 20
NSTAMP = 32

XB = 16384
RING = 81920
STAT = 147456
LDS_BYTES = 163840
S = 4
KBIAS = 2048

sW = 3
sB, sH, sQH, sG = 16, 17, 18, 19
SRD_X, SRD_K, SRD_V, SRD_WQ, SRD_WO, SRD_P = "s[24:27]", "s[28:31]", "s[32:35]", "s[36:39]", "s[40:43]", "s[44:47]"
sSEG = 48
sWQO = 56
sU = 70
sSTA = 77
sSTB = 84
sT0, sT1, sT2 = 20, 21, 22
sSOFF = 91
sKX = 92
sVX = 93
sC = 96
sRING = 98
sXM = 99

vLane = 0
vdX0, vdX1, vdX8 = 2, 3, 4
vdWq, vdK, vdV, vdWo = 5, 9, 13, 17
vrT = 21
vrToR, vrToA, vrToB = 25, 26, 27
vrX, vrK = 28, 30
vL0, vL1 = 32, 33
vQw, vPw, vOw = 34, 35, 36
vStatW, vStatR = 37, 38
vStA0, vStA1, vStB = 39, 40, 41
vSt0, vSt1 = 42, 43
vPr0, vPr1 = 44, 45
vT = 46
vACT = 56
vACC = 96


def v(r, n=1):
    return f"v{r}" if n == 1 else f"v[{r}:{r+n-1}]"


def a(r, n=1):
    return f"a{r}" if n == 1 else f"a[{r}:{r+n-1}]"


def mfma(d, A, B, c):
    return I(f"v_mfma_f32_16x16x32_bf16 {d}, {A}, {B}, {c}")


class K1:
    def __init__(self, cfg):
        self.cfg = cfg
        self.p = []
        self.free = list(range(10, 16))
        self.buf = {}
        self.nstamp = 0
        self.kvpol = cfg.get("kvpol", "")
        self.stpol = cfg.get("stpol", "")

    def e(self, x):
        self.p.append(L(x) if isinstance(x, str) else x)

    def stamp(self):
        if not self.cfg.get("stamps"):
            return []
        i = self.nstamp; self.nstamp += 1
        clk = self.cfg.get("clk", "s_memrealtime")
        return L(f"""{clk} s[100:101]
        s_waitcnt lgkmcnt(0)
        v_writelane_b32 v{vSt0}, s100, {i}
        v_writelane_b32 v{vSt1}, s101, {i}""")

    def prologue(self):
        e = self.e
        e(f"""
        s_cmp_ge_u32 s2, 256
        s_cbranch_scc1 L_k1_end
        s_load_dwordx8 s[4:11], s[0:1], 0
        s_load_dwordx2 s[12:13], s[0:1], 32
        s_load_dwordx2 s[14:15], s[0:1], 56
        v_lshrrev_b32 v1, 6, v0
        v_and_b32 v0, 63, v0
        v_readfirstlane_b32 s{sW}, v1
        s_and_b32 s{sT0}, s2, 7
        s_lshr_b32 s{sT1}, s2, 3
        s_and_b32 s{sT2}, s{sT1}, 1
        s_lshl_b32 s{sH}, s{sT0}, 1
        s_add_u32 s{sH}, s{sH}, s{sT2}
        s_lshr_b32 s{sG}, s{sT1}, 1
        s_and_b32 s{sQH}, s{sG}, 1
        s_lshr_b32 s{sB}, s{sG}, 1
        """)
        e(self.stamp())
        e(f"""
        s_mul_i32 s{sT0}, s{sG}, 7
        s_lshr_b32 s{sT1}, s{sT0}, 3
        s_mul_i32 s{sT2}, s{sT2}, 7
        s_add_u32 s{sT1}, s{sT1}, s{sT2}
        s_cmp_ge_u32 s{sT1}, 14
        s_cselect_b32 s{sT2}, 14, 0
        s_sub_u32 s{sT1}, s{sT1}, s{sT2}
        s_and_b32 s55, s{sT1}, 1
        s_lshr_b32 s{sT1}, s{sT1}, 1
        s_lshr_b32 s23, s{sT0}, 4
        """)
        for j in range(7):
            e(f"""
            s_add_u32 s{sT2}, s{sT1}, {j}
            s_cmp_ge_u32 s{sT2}, 7
            s_cselect_b32 s{sT0}, 7, 0
            s_sub_u32 s{sT2}, s{sT2}, s{sT0}
            s_lshl_b32 s{sSEG+j}, s{sT2}, 7
            """)
        t0, t1, t2, t3, t4 = vT, vT + 1, vT + 2, vT + 3, vT + 4
        e(f"""
        v_lshrrev_b32 v{t0}, 3, v0
        v_and_b32 v{t1}, 7, v0
        v_and_b32 v{t2}, 6, v{t0}
        v_xor_b32 v{t1}, v{t1}, v{t2}
        v_lshlrev_b32 v{t1}, 4, v{t1}
        v_mul_u32_u24 v{t2}, 896, v{t0}
        v_add_u32 v{t2}, v{t2}, v{t1}
        s_mul_i32 s{sT0}, s{sW}, {8*896}
        v_add_u32 v{vdX0}, s{sT0}, v{t2}
        v_add_u32 v{vdX1}, {32*896}, v{vdX0}
        v_add_u32 v{vdX8}, {64*896}, v{t2}
        s_lshl_b32 s{sXM}, s{sW}, 10
        s_add_u32 s{sXM}, s{sXM}, {XB}
        s_lshl_b32 s{sRING}, s{sW}, 14
        s_add_u32 s{sRING}, s{sRING}, {RING}
        s_waitcnt lgkmcnt(0)
        s_mul_i32 s{sT0}, s{sG}, 64512
        s_add_u32 s24, s4, s{sT0}
        s_addc_u32 s25, s5, 0
        s_mov_b32 s26, 64512
        s_mov_b32 s27, 0x20000
        """)
        e(f"""
        s_add_u32 s{sT2}, s{sT1}, s{sW}
        s_cmp_ge_u32 s{sT2}, 7
        s_cselect_b32 s{sT0}, 7, 0
        s_sub_u32 s{sT2}, s{sT2}, s{sT0}
        s_lshl_b32 s94, s{sT2}, 7
        s_min_u32 s{sT0}, s{sW}, 2
        s_add_u32 s{sT2}, s{sT1}, s{sT0}
        s_add_u32 s{sT2}, s{sT2}, 4
        s_cmp_ge_u32 s{sT2}, 7
        s_cselect_b32 s{sT0}, 7, 0
        s_sub_u32 s{sT2}, s{sT2}, s{sT0}
        s_lshl_b32 s95, s{sT2}, 7
        """)
        e(self.x_loads(0))
        e(f"""
        s_lshl_b32 s{sT0}, s{sH}, 9
        s_add_u32 s36, s10, s{sT0}
        s_addc_u32 s37, s11, 0
        s_sub_u32 s38, 3670016, s{sT0}
        s_mov_b32 s39, 0x20000
        v_and_b32 v{t3}, 3, v{t0}
        v_lshrrev_b32 v{t4}, 2, v{t0}
        v_lshl_add_u32 v{t3}, v{t4}, 3, v{t3}
        v_lshl_add_u32 v{t3}, v{t3}, 13, v{t1}
        s_lshl_b32 s{sT0}, s{sW}, 7
        v_add_u32 v{vdWq}, s{sT0}, v{t3}
        v_add_u32 v{vdWq+1}, {16*8192-1024}, v{vdWq}
        v_add_u32 v{vdWq+2}, {4*8192-2048}, v{vdWq}
        v_add_u32 v{vdWq+3}, {20*8192-3072}, v{vdWq}
        s_lshl_b32 s{sT2}, s55, 18
        """)
        for ks in range(14):
            if ks % 2 == 0:
                e(f"""s_lshl_b32 s{sWQO+ks}, s{sSEG+ks//2}, 12
                s_add_u32 s{sWQO+ks}, s{sWQO+ks}, s{sT2}""")
            else:
                e(f"s_xor_b32 s{sWQO+ks}, s{sWQO+ks-1}, {1<<18}")
        order = self.cfg.get("first", ["L0", "L1", "X1", "L2", "L3"])
        for o in order[:2]:
            e(self.x_loads(1) if o == "X1" else self.load(int(o[1:])))
        e(f"""
        s_lshl_b32 s{sT0}, s{sB}, 4
        s_add_u32 s{sT0}, s{sT0}, s{sH}
        s_lshl_b32 s{sT0}, s{sT0}, 18
        s_add_u32 s28, s6, s{sT0}
        s_addc_u32 s29, s7, 0
        s_sub_u32 s28, s28, {KBIAS}
        s_subb_u32 s29, s29, 0
        s_mov_b32 s30, {262144+KBIAS}
        s_mov_b32 s31, 0x20000
        s_add_u32 s32, s8, s{sT0}
        s_addc_u32 s33, s9, 0
        s_mov_b32 s34, 262144
        s_mov_b32 s35, 0x20000
        s_mul_i32 s{sT0}, s{sH}, 229376
        s_add_u32 s40, s12, s{sT0}
        s_addc_u32 s41, s13, 0
        s_mov_b32 s42, 229376
        s_mov_b32 s43, 0x20000
        s_lshl_b32 s{sT0}, s{sG}, 20
        s_lshl_b32 s{sT2}, s{sH}, 12
        s_add_u32 s{sT0}, s{sT0}, s{sT2}
        s_add_u32 s44, s14, s{sT0}
        s_addc_u32 s45, s15, 0
        s_sub_u32 s46, {1<<20}, s{sT2}
        s_mov_b32 s47, 0x20000
        s_mul_i32 s{sKX}, s{sQH}, {self.cfg.get('kswap', 0)*8192}
        s_mul_i32 s{sVX}, s{sQH}, {self.cfg.get('vswap', 0)*16384}
        s_mov_b32 s{sC}, 0x3db8aa3b
        s_mov_b32 s{sC+1}, 0x3db8aa3b
        """)
        for o in order[2:]:
            e(self.x_loads(1) if o == "X1" else self.load(int(o[1:])))
        e(f"""
        v_lshl_add_u32 v{t3}, v{t0}, 9, v{t1}
        s_lshl_b32 s{sT0}, s{sW}, 16
        s_add_u32 s{sT0}, s{sT0}, {KBIAS}
        v_add_u32 v{vdK}, s{sT0}, v{t3}
        v_add_u32 v{vdK+1}, {4096-1024}, v{vdK}
        v_subrev_u32 v{vdK+2}, {2048-128}, v{vdK}
        v_add_u32 v{vdK+3}, {4096+128-3072}, v{vdK}
        s_lshl_b32 s{sT0}, s{sW}, 7
        v_add_u32 v{vdV}, s{sT0}, v{t3}
        v_add_u32 v{vdV+1}, {1*3072}, v{vdV}
        v_add_u32 v{vdV+2}, {2*3072}, v{vdV}
        v_add_u32 v{vdV+3}, {3*3072}, v{vdV}
        s_mul_i32 s{sT0}, s{sW}, {64*896}
        v_add_u32 v{vdWo}, s{sT0}, v{t2}
        v_add_u32 v{vdWo+1}, {1*6144}, v{vdWo}
        v_add_u32 v{vdWo+2}, {2*6144}, v{vdWo}
        v_add_u32 v{vdWo+3}, {3*6144}, v{vdWo}
        """)
        for j in range(7):
            e(f"""
            s_add_u32 s{sT2}, s23, {j}
            s_cmp_ge_u32 s{sT2}, 7
            s_cselect_b32 s{sT0}, 7, 0
            s_sub_u32 s{sT2}, s{sT2}, s{sT0}
            s_lshl_b32 s{sU+j}, s{sT2}, 7
            s_lshl_b32 s{sSTA+j}, s{sT2}, 17
            s_lshr_b32 s{sT0}, s{sT2}, 2
            s_add_u32 s{sT0}, s{sT0}, 14
            s_lshl_b32 s{sT0}, s{sT0}, 16
            s_and_b32 s{sT2}, s{sT2}, 3
            s_lshl_b32 s{sT2}, s{sT2}, 10
            s_add_u32 s{sSTB+j}, s{sT0}, s{sT2}
            """)
        e(f"""
        v_lshrrev_b32 v{t0}, 2, v0
        v_bfe_u32 v{t1}, v0, 3, 2
        v_and_b32 v{t2}, 3, v0
        v_lshlrev_b32 v{t2}, 3, v{t2}
        v_lshl_add_u32 v{t2}, v{t0}, 7, v{t2}
        v_lshlrev_b32 v{t1}, 5, v{t1}
        v_add_u32 v{t3}, v{t2}, v{t1}
        v_add_u32 v{vrT}, s{sRING}, v{t3}
        v_xor_b32 v{vrT+1}, 32, v{vrT}
        v_xor_b32 v{vrT+2}, 64, v{vrT}
        v_xor_b32 v{vrT+3}, 96, v{vrT}
        s_lshl_b32 s{sT0}, s{sW}, 5
        v_xor_b32 v{vrToA}, s{sT0}, v{t3}
        v_add_u32 v{vrToR}, {RING}, v{vrToA}
        v_add_u32 v{vrToB}, 40960, v{vrToA}
        """)
        e(f"""
        v_and_b32 v{t0}, 15, v0
        v_lshrrev_b32 v{t1}, 4, v0
        v_and_b32 v{t2}, 6, v0
        v_xor_b32 v{t2}, v{t2}, v{t1}
        v_lshlrev_b32 v{t2}, 4, v{t2}
        v_lshl_add_u32 v{t2}, v{t0}, 7, v{t2}
        v_add_u32 v{vrK}, s{sRING}, v{t2}
        v_xor_b32 v{vrK+1}, 64, v{vrK}
        s_lshl_b32 s{sT0}, s55, 6
        v_xor_b32 v{t2}, s{sT0}, v{t2}
        v_add_u32 v{vrX}, {XB}, v{t2}
        v_xor_b32 v{vrX+1}, 64, v{vrX}
        v_lshlrev_b32 v{vL0}, 4, v0
        v_add_u32 v{vL1}, 40960, v{vL0}
        s_mul_i32 s{sT0}, s{sW}, 10240
        v_add_u32 v{vOw}, s{sT0}, v{vL0}
        v_add_u32 v{vPw}, s{sT0}, v{vOw}
        v_lshrrev_b32 v{t2}, 1, v{t1}
        v_lshlrev_b32 v{t2}, 8, v{t2}
        v_lshl_add_u32 v{t2}, v{t0}, 4, v{t2}
        v_and_b32 v{t3}, 1, v{t1}
        v_lshl_add_u32 v{t2}, v{t3}, 3, v{t2}
        v_add_u32 v{vQw}, s{sT0}, v{t2}
        v_lshlrev_b32 v{t2}, 4, v{t0}
        v_add_u32 v{vStatR}, {STAT}, v{t2}
        s_lshl_b32 s{sT0}, s{sW}, 2
        v_add_u32 v{vStatW}, s{sT0}, v{vStatR}
        s_lshl_b32 s{sT0}, s{sW}, 10
        v_add_u32 v{vStA0}, s{sT0}, v{vL0}
        v_add_u32 v{vStA1}, 65536, v{vStA0}
        v_lshl_add_u32 v{t2}, v{t1}, 3, v{t0}
        v_lshlrev_b32 v{t2}, 3, v{t2}
        s_lshl_b32 s{sT0}, s{sW}, 8
        v_add_u32 v{t2}, s{sT0}, v{t2}
        v_lshrrev_b32 v{t3}, 3, v{t0}
        v_lshl_add_u32 v{vStB}, v{t3}, 30, v{t2}
        """)

    def x_loads(self, half):
        out = []
        tag = f"x{half}"
        js = range(0, 4) if half == 0 else range(4, 7)
        for j in js:
            out += L(f"s_add_u32 m0, s{sXM}, {j*9216}")
            out += L(f"buffer_load_dwordx4 v{vdX0}, {SRD_X}, s{sSEG+j} offen lds", tag)
            out += L(f"s_add_u32 m0, s{sXM}, {j*9216+4096}")
            out += L(f"buffer_load_dwordx4 v{vdX1}, {SRD_X}, s{sSEG+j} offen lds", tag)
        if half == 0:
            out += L(f"""s_mul_i32 s{sSOFF}, s{sW}, 9216
            s_add_u32 m0, s{sSOFF}, {XB+8192}""")
            out += L(f"buffer_load_dwordx4 v{vdX8}, {SRD_X}, s94 offen lds", tag)
        else:
            out += L(f"""s_min_u32 s{sSOFF}, s{sW}, 2
            s_mul_i32 s{sSOFF}, s{sSOFF}, 9216
            s_add_u32 m0, s{sSOFF}, {XB+8192+4*9216}""")
            out += L(f"buffer_load_dwordx4 v{vdX8}, {SRD_X}, s95 offen lds", tag)
        return out

    def wo_place(self, j):
        return [("R", 2), ("R", 0), ("B", 0), ("A", 0), ("R", 2), ("R", 0), ("B", 0)][j]

    def load(self, c):
        tag = f"c{c}"
        pre = []
        if c < 46:
            m0 = f"s_add_u32 m0, s{sRING}, {(c % S)*4096}"
        if c < 14:
            vd, srd, so, pol = vdWq, SRD_WQ, f"s{sWQO+c}", ""
        elif c < 30:
            k = c - 14
            pre.append(f"s_xor_b32 s{sSOFF}, s{sKX}, {(k >> 1)*8192 + (k & 1)*256}")
            vd, srd, so, pol = vdK, SRD_K, f"s{sSOFF}", self.kvpol
        elif c < 46:
            k = c - 30
            pre.append(f"s_xor_b32 s{sSOFF}, s{sVX}, {k*16384}")
            vd, srd, so, pol = vdV, SRD_V, f"s{sSOFF}", self.kvpol
        else:
            j, ee = (c - 46) >> 1, (c - 46) & 1
            kind, base = self.wo_place(j)
            if kind == "R":
                m0 = f"s_add_u32 m0, s{sRING}, {(base+ee)*4096}"
            else:
                pre.append(f"s_lshl_b32 s{sT0}, s{sW}, 13")
                m0 = f"s_add_u32 m0, s{sT0}, {(40960 if kind == 'B' else 0) + ee*4096}"
            if ee:
                pre.append(f"s_add_u32 s{sSOFF}, s{sU+j}, {32*896}")
                so = f"s{sSOFF}"
            else:
                so = f"s{sU+j}"
            vd, srd, pol = vdWo, SRD_WO, ""
        groups = []
        for i in range(4):
            g = []
            if i == 0:
                if c >= 46:
                    g += L("\n".join(pre[:1] if self.wo_place((c - 46) >> 1)[0] != "R" else []))
                    g += L(m0)
                    g += L("\n".join(pre[1:] if self.wo_place((c - 46) >> 1)[0] != "R" else pre))
                else:
                    g += L(m0) + L("\n".join(pre))
            off = f" offset:{1024*i}" if i else ""
            g += L(f"buffer_load_dwordx4 v{vd+i}, {srd}, {so} offen{off} {pol} lds", tag)
            groups.append(g)
        return groups

    def alloc(self, key):
        assert self.free, f"no free fragment buffer for {key}"
        self.buf[key] = self.free.pop(0)
        return self.buf[key] * 16

    def release(self, key):
        self.free.append(self.buf.pop(key))

    def read(self, c):
        base = self.alloc(c)
        tag = f"r{c}"
        so = (c % S) * 4096
        out = []
        if 14 <= c < 30:
            for j in range(4):
                out += L(f"ds_read_b128 {a(base+4*j, 4)}, v{vrK+(j & 1)} offset:{so + (j >> 1)*2048}", tag)
        else:
            for nt in range(4):
                for hf in range(2):
                    out += L(f"ds_read_b64_tr_b16 {a(base+4*nt+2*hf, 2)}, v{vrT+nt} offset:{so + hf*2048}", tag)
        return out

    def pumpA(self, c):
        r = self.read(c)
        return [[wait_vm(f"c{c}"), r[0]]] + r[1:]

    def pumpB(self, c):
        if c + S >= 50:
            return []
        g = self.load(c + S)
        return [[wait_ds(f"r{c}")] + g[0]] + g[1:]

    def with_pumps(self, main, pumps, pre=None):
        n = len(pumps)
        out = main
        if pre:
            out = merge(out, pre, 0.0, 0.25)
        for i, c in enumerate(pumps):
            lo, hi = i / n, (i + 1) / n
            if pre and i == 0:
                lo = min(0.2, hi / 3)
            mid = lo + (hi - lo) * 0.45
            out = merge(out, self.pumpA(c), lo, mid)
            out = merge(out, self.pumpB(c), lo + (hi - lo) * 0.6, hi)
        return out

    def x_reads(self, ks):
        b = vACT + 20 * (ks & 1)
        return [I(f"ds_read_b128 {v(b+4*mt, 4)}, v{vrX+(ks & 1)} offset:{(ks >> 1)*9216 + mt*2048}") for mt in range(5)]

    def p_reads(self, kp):
        b = vACT + 20 * (kp & 1)
        out = []
        for mt in range(5):
            off = (kp * 5 + mt) * 1024
            r = vL0
            if off >= 40960:
                off -= 40960; r = vL1
            out.append(I(f"ds_read_b128 {v(b+4*mt, 4)}, v{r} offset:{off}"))
        return out

    def gemm_step(self, c, act, first):
        base = self.buf[c] * 16
        out = []
        for nt in range(4):
            for mt in range(5):
                d = v(vACC + (nt * 5 + mt) * 4, 4)
                out.append(mfma(d, a(base + 4 * nt, 4), v(act + 4 * mt, 4), "0" if first else d))
        return out

    def body(self):
        e = self.e
        cfg = self.cfg
        nxt = [0]

        def take(n):
            r = list(range(nxt[0], min(nxt[0] + n, 46)))
            nxt[0] += len(r)
            return r

        e([wait_vm("x0")]); e("s_barrier")
        e(self.stamp())
        e(self.x_reads(0))
        c = take(1)[0]
        e(self.pumpA(c)); e(self.pumpB(c))
        qp_p = cfg.get("qp_pumps", [1] * 14)
        for ks in range(14):
            main = self.gemm_step(ks, vACT + 20 * (ks & 1), ks == 0)
            if ks == 7:
                e([wait_vm("x1")]); e("s_barrier")
            pre = self.x_reads(ks + 1) if ks < 13 else None
            e(self.with_pumps(main, take(qp_p[ks]), pre))
            self.release(ks)
        e(self.stamp())
        qe = []
        for nt in range(4):
            for mt in range(5):
                d = vACC + (nt * 5 + mt) * 4
                t = vT + 2 * ((nt * 5 + mt) % 4)
                qe.append(L(f"""v_cvt_pk_bf16_f32 v{t}, v{d}, v{d+1}
                v_cvt_pk_bf16_f32 v{t+1}, v{d+2}, v{d+3}
                ds_write_b64 v{vQw}, {v(t, 2)} offset:{((nt >> 1)*5 + mt)*1024 + (nt & 1)*512}"""))
        e(self.with_pumps(qe, take(cfg.get("qe_pumps", 1))))
        e([wait_ds()]); e("s_barrier")
        qr = [I(f"ds_read_b128 {a((kq*5+mt)*4, 4)}, v{vL0} offset:{(kq*5+mt)*1024}") for kq in range(8) for mt in range(5)]
        e(qr[:20])
        e(self.stamp())
        vM = vT
        qk_p = cfg.get("qk_pumps", [1] * 16)

        def maxops(t):
            out = []
            for mt in range(5):
                s = vACC + (t * 5 + mt) * 4
                if t == 0:
                    out += L(f"""v_max3_f32 v{vM+mt}, v{s}, v{s+1}, v{s+2}
                    v_max_f32 v{vM+mt}, v{vM+mt}, v{s+3}""")
                else:
                    out += L(f"""v_max3_f32 v{vM+mt}, v{vM+mt}, v{s}, v{s+1}
                    v_max3_f32 v{vM+mt}, v{vM+mt}, v{s+2}, v{s+3}""")
            return out

        for k in range(16):
            c = 14 + k
            t, hf = k >> 1, k & 1
            base = self.buf[c] * 16
            main = []
            for j in range(4):
                kq = 4 * hf + j
                for mt in range(5):
                    d = v(vACC + (t * 5 + mt) * 4, 4)
                    main.append(mfma(d, a(base + 4 * j, 4), a((kq * 5 + mt) * 4, 4), "0" if kq == 0 else d))
            if k == 0:
                main = merge(main, qr[20:], 0.0, 1.0)
            if hf == 0 and t > 0:
                main = merge(main, maxops(t - 1), 0.4, 1.0)
            e(self.with_pumps(main, take(qk_p[k])))
            self.release(c)
        self.free += list(range(0, 10))
        e(self.stamp())
        sm = [[x] for x in maxops(7)]
        tA = vACT
        for op in ("v_permlane32_swap_b32", "v_permlane16_swap_b32"):
            sm.append(L("\n".join(f"v_mov_b32 v{tA+mt}, v{vM+mt}" for mt in range(5))))
            sm.append(L("\n".join(f"{op} v{tA+mt}, v{vM+mt}" for mt in range(5))))
            sm.append(L("\n".join(f"v_max_f32 v{vM+mt}, v{vM+mt}, v{tA+mt}" for mt in range(5))))
        sm.append(L("\n".join(f"ds_write_b32 v{vStatW}, v{vM+mt} offset:{mt*256}" for mt in range(5))))
        e(sm)
        e([wait_ds()]); e("s_barrier")
        e("\n".join(f"ds_read_b128 {v(tA+4*mt, 4)}, v{vStatR} offset:{mt*256}" for mt in range(5)))
        vNM = vT
        for mt in range(5):
            e(f"""v_max3_f32 v{tA+4*mt}, v{tA+4*mt}, v{tA+4*mt+1}, v{tA+4*mt+2}
            v_max_f32 v{tA+4*mt}, v{tA+4*mt}, v{tA+4*mt+3}""")
        for mt in range(5):
            e(f"v_mul_f32 v{vNM+2*mt}, 0xbdb8aa3b, v{tA+4*mt}")
        vSum = tA
        vPk = tA + 12
        sm = []
        for j in range(4):
            for mt in range(5):
                g = []
                regs = [vACC + ((2 * j + hh) * 5 + mt) * 4 for hh in range(2)]
                pk = vPk + 4 * ((j * 5 + mt) & 1)
                for s in regs:
                    for o in (0, 2):
                        g += L(f"v_pk_fma_f32 {v(s+o, 2)}, {v(s+o, 2)}, s[{sC}:{sC+1}], {v(vNM+2*mt, 2)} op_sel_hi:[1,1,0]")
                for s in regs:
                    for o in range(4):
                        g += L(f"v_exp_f32 v{s+o}, v{s+o}")
                first = (j == 0)
                if first:
                    g += L(f"v_pk_add_f32 {v(vSum+2*mt, 2)}, {v(regs[0], 2)}, {v(regs[0]+2, 2)}")
                else:
                    g += L(f"v_pk_add_f32 {v(vSum+2*mt, 2)}, {v(vSum+2*mt, 2)}, {v(regs[0], 2)}")
                g += L(f"v_cvt_pk_bf16_f32 v{pk}, v{regs[0]}, v{regs[0]+1}")
                if not first:
                    g += L(f"v_pk_add_f32 {v(vSum+2*mt, 2)}, {v(vSum+2*mt, 2)}, {v(regs[0]+2, 2)}")
                g += L(f"v_cvt_pk_bf16_f32 v{pk+1}, v{regs[0]+2}, v{regs[0]+3}")
                g += L(f"v_pk_add_f32 {v(vSum+2*mt, 2)}, {v(vSum+2*mt, 2)}, {v(regs[1], 2)}")
                g += L(f"v_cvt_pk_bf16_f32 v{pk+2}, v{regs[1]}, v{regs[1]+1}")
                g += L(f"v_pk_add_f32 {v(vSum+2*mt, 2)}, {v(vSum+2*mt, 2)}, {v(regs[1]+2, 2)}")
                g += L(f"v_cvt_pk_bf16_f32 v{pk+3}, v{regs[1]+2}, v{regs[1]+3}")
                g += L(f"ds_write_b128 v{vPw}, {v(pk, 4)} offset:{(j*5+mt)*1024}")
                sm += g
        e(self.with_pumps(sm, take(cfg.get("sm_pumps", 4))))
        vL = vT
        for mt in range(5):
            e(f"v_add_f32 v{vL+mt}, v{vSum+2*mt}, v{vSum+2*mt+1}")
        for op in ("v_permlane32_swap_b32", "v_permlane16_swap_b32"):
            e("\n".join(f"v_mov_b32 v{tA+mt}, v{vL+mt}" for mt in range(5)))
            e("\n".join(f"{op} v{tA+mt}, v{vL+mt}" for mt in range(5)))
            e("\n".join(f"v_add_f32 v{vL+mt}, v{vL+mt}, v{tA+mt}" for mt in range(5)))
        e("\n".join(f"ds_write_b32 v{vStatW}, v{vL+mt} offset:{2048+mt*256}" for mt in range(5)))
        e([wait_ds()]); e("s_barrier")
        e(self.stamp())
        e(self.p_reads(0))
        tS = vACC + 80
        rs = L("\n".join(f"ds_read_b128 {v(tS+4*mt, 4)}, v{vStatR} offset:{2048+mt*256}" for mt in range(5)))
        rs2 = []
        for mt in range(5):
            rs2 += L(f"""v_add_f32 v{tS+4*mt}, v{tS+4*mt}, v{tS+4*mt+1}
            v_add_f32 v{tS+4*mt+2}, v{tS+4*mt+2}, v{tS+4*mt+3}
            v_add_f32 v{tS+4*mt}, v{tS+4*mt}, v{tS+4*mt+2}
            v_rcp_f32 v{vT+2*mt}, v{tS+4*mt}""")
        rem = 46 - nxt[0]
        pv_p = cfg.get("pv_pumps")
        if pv_p is None:
            pv_p = [((k + 1) * rem) // 15 - (k * rem) // 15 for k in range(15)] + [0]
        for k in range(16):
            c = 30 + k
            while c not in self.buf:
                cc = take(1)[0]
                e(self.pumpA(cc)); e(self.pumpB(cc))
            main = self.gemm_step(c, vACT + 20 * (k & 1), k == 0)
            if k == 9:
                e("s_barrier")
            if k == 2:
                main = merge(main, rs, 0.3, 0.6)
            if k == 3:
                main = merge(main, rs2, 0.0, 1.0)
            pre = self.p_reads(k + 1) if k < 15 else None
            e(self.with_pumps(main, take(pv_p[k]), pre))
            self.release(c)
        assert nxt[0] == 46
        e(self.stamp())
        for j in range(2):
            for mt in range(5):
                pk = vACT + 4 * ((j * 5 + mt) % 4)
                for hh in range(2):
                    d = vACC + ((2 * j + hh) * 5 + mt) * 4
                    e(f"""v_pk_mul_f32 {v(d, 2)}, {v(d, 2)}, {v(vT+2*mt, 2)} op_sel_hi:[1,0]
                    v_pk_mul_f32 {v(d+2, 2)}, {v(d+2, 2)}, {v(vT+2*mt, 2)} op_sel_hi:[1,0]
                    v_cvt_pk_bf16_f32 v{pk+2*hh}, v{d}, v{d+1}
                    v_cvt_pk_bf16_f32 v{pk+2*hh+1}, v{d+2}, v{d+3}""")
                e(f"ds_write_b128 v{vOw}, {v(pk, 4)} offset:{(j*5+mt)*1024}")
        e([wait_vm("c47"), wait_ds()]); e("s_barrier")
        self.free = [x for x in self.free if x >= 10]
        assert len(self.free) == 6

        def wo_reads(j):
            kind, base = self.wo_place(j)
            b0 = self.alloc(("u", j, 0)); b1 = self.alloc(("u", j, 1))
            out = []
            for ko in range(8):
                dst = (b0 if ko < 4 else b1) + 4 * (ko & 3)
                for hf in range(2):
                    if kind == "R":
                        r, off = vrToR, (ko >> 1) * 16384 + (base + (ko & 1)) * 4096
                    else:
                        r, off = (vrToA if kind == "A" else vrToB), ko * 4096
                    out += L(f"ds_read_b64_tr_b16 {a(dst+2*hf, 2)}, v{r} offset:{off + hf*2048}", f"ru{j}")
            return out

        def wo_loads(j):
            return self.load(46 + 2 * j) + self.load(47 + 2 * j)

        orr = [I(f"ds_read_b128 {a((ko*5+mt)*4, 4)}, v{vL0} offset:{(ko*5+mt)*1024}", "ro") for ko in range(8) for mt in range(5)]
        w0 = wo_reads(0)
        first = []
        for ko in range(8):
            first += w0[2 * ko:2 * ko + 2] + orr[5 * ko:5 * ko + 5]
        e(first[:14])
        e(self.stamp())

        def epi(j):
            acc = vACC + 20 * j
            pk = vACT + 12 * (j & 1)
            out = []
            for mt in range(5):
                out += L(f"""v_cvt_pk_bf16_f32 v{pk+2*mt}, v{acc+4*mt}, v{acc+4*mt+1}
                v_cvt_pk_bf16_f32 v{pk+2*mt+1}, v{acc+4*mt+2}, v{acc+4*mt+3}""")
                if mt == 1:
                    out += L(f"buffer_store_dwordx4 {v(pk, 4)}, v{vStA0}, {SRD_P}, s{sSTA+j} offen {self.stpol}", "st")
                if mt == 3:
                    out += L(f"buffer_store_dwordx4 {v(pk+4, 4)}, v{vStA1}, {SRD_P}, s{sSTA+j} offen {self.stpol}", "st")
                if mt == 4:
                    out += L(f"buffer_store_dwordx2 {v(pk+8, 2)}, v{vStB}, {SRD_P}, s{sSTB+j} offen {self.stpol}", "st")
            return out

        loads_after = {0: [3, 4], 1: [5], 2: [6]}
        st_at = cfg.get("st_at", {1: [0], 2: [1], 3: [2], 4: [3], 5: [4], 6: [5]})
        for j in range(7):
            b = [self.buf[("u", j, 0)] * 16, self.buf[("u", j, 1)] * 16]
            main = []
            acc = vACC + 20 * j
            for ko in range(8):
                for mt in range(5):
                    d = v(acc + 4 * mt, 4)
                    main.append(mfma(d, a(b[ko >> 2] + 4 * (ko & 3), 4), a((ko * 5 + mt) * 4, 4), "0" if ko == 0 else d))
            if j == 0:
                main = merge(main, first[14:], 0.0, 0.6)
                main = merge(main, wo_loads(2), 0.0, 0.5)
                lo = 0.7
            else:
                lo = 0.1
            if j < 6:
                r = wo_reads(j + 1)
                sync = [wait_vm(f"c{47+2*(j+1)}"), wait_ds(), I("s_barrier")]
                main = merge(main, [sync + [r[0]]] + r[1:], lo, min(1.0, lo + 0.5))
                lds = []
                for u in loads_after.get(j, []):
                    lds += wo_loads(u)
                if lds:
                    main = merge(main, lds, lo + 0.02, 1.0)
            eps = []
            for jj in st_at.get(j, []):
                eps += epi(jj)
            if eps:
                main = merge(main, eps, 0.3, 0.95)
            e(main)
            self.release(("u", j, 0)); self.release(("u", j, 1))
        done = [jj for l in st_at.values() for jj in l]
        for jj in range(7):
            if jj not in done:
                e(epi(jj))
        e(self.stamp())
        if cfg.get("stamps"):
            e([wait_vm(None)])
            e(self.stamp())
            e(f"""
            s_cmp_lg_u32 s{sW}, {cfg.get('stampwave', 0)}
            s_cbranch_scc1 L_k1_end
            s_mul_i32 s{sT0}, s2, {NSTAMP*8}
            s_add_u32 s{sT0}, s{sT0}, {STAMP_OFF}
            s_add_u32 s24, s14, s{sT0}
            s_addc_u32 s25, s15, 0
            s_mov_b32 s26, {16*8}
            s_mov_b32 s27, 0x20000
            v_lshlrev_b32 v1, 3, v0
            buffer_store_dwordx2 v[{vSt0}:{vSt1}], v1, s[24:27], 0 offen
            """)
        e("L_k1_end:\ns_endpgm")

    def text(self):
        self.prologue()
        self.body()
        st = {}
        t = finalize(self.p, st)
        print("K1:", st, "stamps", self.nstamp, file=sys.stderr)
        return t


def k2_text(cfg):
    p = []
    e = lambda x: p.append(L(x) if isinstance(x, str) else x)
    stamps = cfg.get("stamps")
    e(f"""
    s_cmp_ge_u32 s2, 256
    s_cbranch_scc1 L_k2_end
    s_load_dwordx2 s[4:5], s[0:1], 40
    s_load_dwordx2 s[6:7], s[0:1], 56
    """)
    if stamps:
        e("s_memrealtime s[40:41]")
    e(f"""
    s_lshr_b32 s8, s2, 4
    s_and_b32 s9, s2, 15
    v_lshlrev_b32 v1, 4, v0
    s_lshl_b32 s10, s2, 16
    s_waitcnt lgkmcnt(0)
    s_add_u32 s12, s6, s10
    s_addc_u32 s13, s7, 0
    s_mov_b32 s14, 65536
    s_mov_b32 s15, 0x20000
    """)
    for h in range(16):
        e(f"s_mov_b32 s11, {h*4096}")
        e(f"buffer_load_dwordx4 {v(8+4*h, 4)}, v1, s[12:15], s11 offen {cfg.get('k2pol', '')}")
    e(f"""
    s_mul_i32 s10, s8, 64512
    s_add_u32 s16, s4, s10
    s_addc_u32 s17, s5, 0
    s_mov_b32 s18, 64512
    s_mov_b32 s19, 0x20000
    s_cmp_ge_u32 s9, 14
    s_cbranch_scc1 L_k2_typeB
    s_lshr_b32 s10, s9, 1
    s_and_b32 s11, s9, 1
    s_lshl_b32 s10, s10, 7
    s_mul_i32 s11, s11, {32*896}
    s_add_u32 s10, s10, s11
    v_and_b32 v2, 15, v0
    v_mul_u32_u24 v2, 896, v2
    v_lshrrev_b32 v3, 4, v0
    v_lshl_add_u32 v2, v3, 3, v2
    v_add_u32 v2, s10, v2
    v_add_u32 v3, {16*896}, v2
    s_branch L_k2_sum
    L_k2_typeB:
    s_sub_u32 s10, s9, 14
    s_lshl_b32 s10, s10, 9
    s_add_u32 s10, s10, {64*896}
    v_and_b32 v2, 3, v0
    v_mul_u32_u24 v2, {2*896}, v2
    v_lshrrev_b32 v3, 2, v0
    v_lshl_add_u32 v2, v3, 3, v2
    v_add_u32 v2, s10, v2
    s_cmp_eq_u32 s9, 15
    s_cselect_b32 s11, 192, -1
    v_cmp_le_u32 vcc, s11, v0
    v_mov_b32 v4, 0x40000000
    v_cndmask_b32 v2, v2, v4, vcc
    v_add_u32 v3, 896, v2
    L_k2_sum:
    s_mov_b32 s20, 0xffff0000
    """)
    acc = 72
    for h in range(16):
        for d in range(4):
            r = 8 + 4 * h + d
            if h == 0:
                e(f"""v_lshlrev_b32 v{acc+2*d}, 16, v{r}
                v_and_b32 v{acc+2*d+1}, s20, v{r}""")
            else:
                e(f"""v_lshlrev_b32 v4, 16, v{r}
                v_and_b32 v5, s20, v{r}
                v_pk_add_f32 {v(acc+2*d, 2)}, {v(acc+2*d, 2)}, v[4:5]""")
    if stamps:
        e("s_memrealtime s[42:43]")
    for d in range(4):
        e(f"v_cvt_pk_bf16_f32 v{8+d}, v{acc+2*d}, v{acc+2*d+1}")
    e("""
    buffer_store_dwordx2 v[8:9], v2, s[16:19], 0 offen
    buffer_store_dwordx2 v[10:11], v3, s[16:19], 0 offen
    """)
    if stamps:
        e(f"""
        s_waitcnt vmcnt(0)
        s_memrealtime s[44:45]
        s_waitcnt lgkmcnt(0)
        s_mul_i32 s10, s2, {NSTAMP*8}
        s_add_u32 s10, s10, {STAMP_OFF + 16*8}
        s_add_u32 s24, s6, s10
        s_addc_u32 s25, s7, 0
        s_mov_b32 s26, 24
        s_mov_b32 s27, 0x20000
        v_writelane_b32 v6, s40, 0
        v_writelane_b32 v7, s41, 0
        v_writelane_b32 v6, s42, 1
        v_writelane_b32 v7, s43, 1
        v_writelane_b32 v6, s44, 2
        v_writelane_b32 v7, s45, 2
        v_lshlrev_b32 v1, 3, v0
        buffer_store_dwordx2 v[6:7], v1, s[24:27], 0 offen
        """)
    e("L_k2_end:\ns_endpgm")
    return finalize(p)


def gen(cfg):
    k1 = K1(cfg).text()
    k2 = k2_text(cfg)
    return build_file([("mha_fused_kernel", k1, 512, 102, 256), ("mha_reduce_kernel", k2, 80, 48, 80)],
                      [("mha_fused_kernel", 256, 256, LDS_BYTES), ("mha_reduce_kernel", 256, 256, 0)])


if __name__ == "__main__":
    cfg = eval(sys.argv[2]) if len(sys.argv) > 2 else {}
    open(sys.argv[1], "w").write(gen(cfg))
```

```python
import sys
from asmlib import *
from ir import *

STAMP_OFF = 200 << 20
NSTAMP = 32

XB = 16384
RING = 81920
STAT = 147456
LDS_BYTES = 163840
S = 4
KBIAS = 2048

sW = 3
sB, sH, sQH, sG = 16, 17, 18, 19
SRD_X, SRD_K, SRD_V, SRD_WQ, SRD_WO, SRD_P = "s[24:27]", "s[28:31]", "s[32:35]", "s[36:39]", "s[40:43]", "s[44:47]"
sSEG = 48
sWQO = 56
sU = 70
sSTA = 77
sSTB = 84
sT0, sT1, sT2 = 20, 21, 22
sSOFF = 91
sKX = 92
sVX = 93
sC = 96
sRING = 98
sXM = 99

vLane = 0
vdX0, vdX1, vdX8 = 2, 3, 4
vdWq, vdK, vdV, vdWo = 5, 9, 13, 17
vrT = 21
vrToR, vrToA, vrToB = 25, 26, 27
vrX, vrK = 28, 30
vL0, vL1 = 32, 33
vQw, vPw, vOw = 34, 35, 36
vStatW, vStatR = 37, 38
vStA0, vStA1, vStB = 39, 40, 41
vSt0, vSt1 = 42, 43
vPr0, vPr1 = 44, 45
vT = 46
vACT = 56
vACC = 96


def v(r, n=1):
    return f"v{r}" if n == 1 else f"v[{r}:{r+n-1}]"


def a(r, n=1):
    return f"a{r}" if n == 1 else f"a[{r}:{r+n-1}]"


def mfma(d, A, B, c):
    return I(f"v_mfma_f32_16x16x32_bf16 {d}, {A}, {B}, {c}")


class K1:
    def __init__(self, cfg):
        self.cfg = cfg
        self.p = []
        self.free = list(range(10, 16))
        self.buf = {}
        self.nstamp = 0
        self.kvpol = cfg.get("kvpol", "")
        self.stpol = cfg.get("stpol", "")

    def e(self, x):
        self.p.append(L(x) if isinstance(x, str) else x)

    def stamp(self):
        if not self.cfg.get("stamps"):
            return []
        i = self.nstamp; self.nstamp += 1
        clk = self.cfg.get("clk", "s_memrealtime")
        return L(f"""{clk} s[100:101]
        s_waitcnt lgkmcnt(0)
        v_writelane_b32 v{vSt0}, s100, {i}
        v_writelane_b32 v{vSt1}, s101, {i}""")

    def prologue(self):
        e = self.e
        e(f"""
        s_cmp_ge_u32 s2, 256
        s_cbranch_scc1 L_k1_end
        s_load_dwordx8 s[4:11], s[0:1], 0
        s_load_dwordx2 s[12:13], s[0:1], 32
        s_load_dwordx2 s[14:15], s[0:1], 56
        v_lshrrev_b32 v1, 6, v0
        v_and_b32 v0, 63, v0
        v_readfirstlane_b32 s{sW}, v1
        s_and_b32 s{sT0}, s2, 7
        s_lshr_b32 s{sT1}, s2, 3
        s_and_b32 s{sT2}, s{sT1}, 1
        s_lshl_b32 s{sH}, s{sT0}, 1
        s_add_u32 s{sH}, s{sH}, s{sT2}
        s_lshr_b32 s{sG}, s{sT1}, 1
        s_and_b32 s{sQH}, s{sG}, 1
        s_lshr_b32 s{sB}, s{sG}, 1
        """)
        e(self.stamp())
        e(f"""
        s_mul_i32 s{sT0}, s{sG}, 7
        s_lshr_b32 s{sT1}, s{sT0}, 3
        s_mul_i32 s{sT2}, s{sT2}, 7
        s_add_u32 s{sT1}, s{sT1}, s{sT2}
        s_cmp_ge_u32 s{sT1}, 14
        s_cselect_b32 s{sT2}, 14, 0
        s_sub_u32 s{sT1}, s{sT1}, s{sT2}
        s_and_b32 s55, s{sT1}, 1
        s_lshr_b32 s{sT1}, s{sT1}, 1
        s_lshr_b32 s23, s{sT0}, 4
        """)
        for j in range(7):
            e(f"""
            s_add_u32 s{sT2}, s{sT1}, {j}
            s_cmp_ge_u32 s{sT2}, 7
            s_cselect_b32 s{sT0}, 7, 0
            s_sub_u32 s{sT2}, s{sT2}, s{sT0}
            s_lshl_b32 s{sSEG+j}, s{sT2}, 7
            """)
        t0, t1, t2, t3, t4 = vT, vT + 1, vT + 2, vT + 3, vT + 4
        e(f"""
        v_lshrrev_b32 v{t0}, 3, v0
        v_and_b32 v{t1}, 7, v0
        v_and_b32 v{t2}, 6, v{t0}
        v_xor_b32 v{t1}, v{t1}, v{t2}
        v_lshlrev_b32 v{t1}, 4, v{t1}
        v_mul_u32_u24 v{t2}, 896, v{t0}
        v_add_u32 v{t2}, v{t2}, v{t1}
        s_mul_i32 s{sT0}, s{sW}, {8*896}
        v_add_u32 v{vdX0}, s{sT0}, v{t2}
        v_add_u32 v{vdX1}, {32*896}, v{vdX0}
        v_add_u32 v{vdX8}, {64*896}, v{t2}
        s_lshl_b32 s{sXM}, s{sW}, 10
        s_add_u32 s{sXM}, s{sXM}, {XB}
        s_lshl_b32 s{sRING}, s{sW}, 14
        s_add_u32 s{sRING}, s{sRING}, {RING}
        s_waitcnt lgkmcnt(0)
        s_mul_i32 s{sT0}, s{sG}, 64512
        s_add_u32 s24, s4, s{sT0}
        s_addc_u32 s25, s5, 0
        s_mov_b32 s26, 64512
        s_mov_b32 s27, 0x20000
        """)
        e(f"""
        s_add_u32 s{sT2}, s{sT1}, s{sW}
        s_cmp_ge_u32 s{sT2}, 7
        s_cselect_b32 s{sT0}, 7, 0
        s_sub_u32 s{sT2}, s{sT2}, s{sT0}
        s_lshl_b32 s94, s{sT2}, 7
        s_min_u32 s{sT0}, s{sW}, 2
        s_add_u32 s{sT2}, s{sT1}, s{sT0}
        s_add_u32 s{sT2}, s{sT2}, 4
        s_cmp_ge_u32 s{sT2}, 7
        s_cselect_b32 s{sT0}, 7, 0
        s_sub_u32 s{sT2}, s{sT2}, s{sT0}
        s_lshl_b32 s95, s{sT2}, 7
        """)
        e(self.x_loads(0))
        e(f"""
        s_lshl_b32 s{sT0}, s{sH}, 9
        s_add_u32 s36, s10, s{sT0}
        s_addc_u32 s37, s11, 0
        s_sub_u32 s38, 3670016, s{sT0}
        s_mov_b32 s39, 0x20000
        v_and_b32 v{t3}, 3, v{t0}
        v_lshrrev_b32 v{t4}, 2, v{t0}
        v_lshl_add_u32 v{t3}, v{t4}, 3, v{t3}
        v_lshl_add_u32 v{t3}, v{t3}, 13, v{t1}
        s_lshl_b32 s{sT0}, s{sW}, 7
        v_add_u32 v{vdWq}, s{sT0}, v{t3}
        v_add_u32 v{vdWq+1}, {16*8192-1024}, v{vdWq}
        v_add_u32 v{vdWq+2}, {4*8192-2048}, v{vdWq}
        v_add_u32 v{vdWq+3}, {20*8192-3072}, v{vdWq}
        s_lshl_b32 s{sT2}, s55, 18
        """)
        for ks in range(14):
            if ks % 2 == 0:
                e(f"""s_lshl_b32 s{sWQO+ks}, s{sSEG+ks//2}, 12
                s_add_u32 s{sWQO+ks}, s{sWQO+ks}, s{sT2}""")
            else:
                e(f"s_xor_b32 s{sWQO+ks}, s{sWQO+ks-1}, {1<<18}")
        order = self.cfg.get("first", ["L0", "L1", "X1", "L2", "L3"])
        for o in order[:2]:
            e(self.x_loads(1) if o == "X1" else self.load(int(o[1:])))
        e(f"""
        s_lshl_b32 s{sT0}, s{sB}, 4
        s_add_u32 s{sT0}, s{sT0}, s{sH}
        s_lshl_b32 s{sT0}, s{sT0}, 18
        s_add_u32 s28, s6, s{sT0}
        s_addc_u32 s29, s7, 0
        s_sub_u32 s28, s28, {KBIAS}
        s_subb_u32 s29, s29, 0
        s_mov_b32 s30, {262144+KBIAS}
        s_mov_b32 s31, 0x20000
        s_add_u32 s32, s8, s{sT0}
        s_addc_u32 s33, s9, 0
        s_mov_b32 s34, 262144
        s_mov_b32 s35, 0x20000
        s_mul_i32 s{sT0}, s{sH}, 229376
        s_add_u32 s40, s12, s{sT0}
        s_addc_u32 s41, s13, 0
        s_mov_b32 s42, 229376
        s_mov_b32 s43, 0x20000
        s_lshl_b32 s{sT0}, s{sG}, 4
        s_add_u32 s{sT0}, s{sT0}, s{sH}
        s_mul_i32 s{sT0}, s{sT0}, 64512
        s_add_u32 s44, s14, s{sT0}
        s_addc_u32 s45, s15, 0
        s_mov_b32 s46, 64512
        s_mov_b32 s47, 0x20000
        s_mul_i32 s{sKX}, s{sQH}, {self.cfg.get('kswap', 0)*8192}
        s_mul_i32 s{sVX}, s{sQH}, {self.cfg.get('vswap', 0)*16384}
        s_mov_b32 s{sC}, 0x3db8aa3b
        s_mov_b32 s{sC+1}, 0x3db8aa3b
        """)
        for o in order[2:]:
            e(self.x_loads(1) if o == "X1" else self.load(int(o[1:])))
        e(f"""
        v_lshl_add_u32 v{t3}, v{t0}, 9, v{t1}
        s_lshl_b32 s{sT0}, s{sW}, 16
        s_add_u32 s{sT0}, s{sT0}, {KBIAS}
        v_add_u32 v{vdK}, s{sT0}, v{t3}
        v_add_u32 v{vdK+1}, {4096-1024}, v{vdK}
        v_subrev_u32 v{vdK+2}, {2048-128}, v{vdK}
        v_add_u32 v{vdK+3}, {4096+128-3072}, v{vdK}
        s_lshl_b32 s{sT0}, s{sW}, 7
        v_add_u32 v{vdV}, s{sT0}, v{t3}
        v_add_u32 v{vdV+1}, {1*3072}, v{vdV}
        v_add_u32 v{vdV+2}, {2*3072}, v{vdV}
        v_add_u32 v{vdV+3}, {3*3072}, v{vdV}
        s_mul_i32 s{sT0}, s{sW}, {64*896}
        v_add_u32 v{vdWo}, s{sT0}, v{t2}
        v_add_u32 v{vdWo+1}, {1*6144}, v{vdWo}
        v_add_u32 v{vdWo+2}, {2*6144}, v{vdWo}
        v_add_u32 v{vdWo+3}, {3*6144}, v{vdWo}
        """)
        for j in range(7):
            e(f"""
            s_add_u32 s{sT2}, s23, {j}
            s_cmp_ge_u32 s{sT2}, 7
            s_cselect_b32 s{sT0}, 7, 0
            s_sub_u32 s{sT2}, s{sT2}, s{sT0}
            s_lshl_b32 s{sU+j}, s{sT2}, 7
            s_lshl_b32 s{sSTA+j}, s{sT2}, 13
            s_lshl_b32 s{sSTB+j}, s{sT2}, 10
            """)
        e(f"""
        v_lshrrev_b32 v{t0}, 2, v0
        v_bfe_u32 v{t1}, v0, 3, 2
        v_and_b32 v{t2}, 3, v0
        v_lshlrev_b32 v{t2}, 3, v{t2}
        v_lshl_add_u32 v{t2}, v{t0}, 7, v{t2}
        v_lshlrev_b32 v{t1}, 5, v{t1}
        v_add_u32 v{t3}, v{t2}, v{t1}
        v_add_u32 v{vrT}, s{sRING}, v{t3}
        v_xor_b32 v{vrT+1}, 32, v{vrT}
        v_xor_b32 v{vrT+2}, 64, v{vrT}
        v_xor_b32 v{vrT+3}, 96, v{vrT}
        s_lshl_b32 s{sT0}, s{sW}, 5
        v_xor_b32 v{vrToA}, s{sT0}, v{t3}
        v_add_u32 v{vrToR}, {RING}, v{vrToA}
        v_add_u32 v{vrToB}, 40960, v{vrToA}
        """)
        e(f"""
        v_and_b32 v{t0}, 15, v0
        v_lshrrev_b32 v{t1}, 4, v0
        v_and_b32 v{t2}, 6, v0
        v_xor_b32 v{t2}, v{t2}, v{t1}
        v_lshlrev_b32 v{t2}, 4, v{t2}
        v_lshl_add_u32 v{t2}, v{t0}, 7, v{t2}
        v_add_u32 v{vrK}, s{sRING}, v{t2}
        v_xor_b32 v{vrK+1}, 64, v{vrK}
        s_lshl_b32 s{sT0}, s55, 6
        v_xor_b32 v{t2}, s{sT0}, v{t2}
        v_add_u32 v{vrX}, {XB}, v{t2}
        v_xor_b32 v{vrX+1}, 64, v{vrX}
        v_lshlrev_b32 v{vL0}, 4, v0
        v_add_u32 v{vL1}, 40960, v{vL0}
        s_mul_i32 s{sT0}, s{sW}, 10240
        v_add_u32 v{vOw}, s{sT0}, v{vL0}
        v_add_u32 v{vPw}, s{sT0}, v{vOw}
        v_lshrrev_b32 v{t2}, 1, v{t1}
        v_lshlrev_b32 v{t2}, 8, v{t2}
        v_lshl_add_u32 v{t2}, v{t0}, 4, v{t2}
        v_and_b32 v{t3}, 1, v{t1}
        v_lshl_add_u32 v{t2}, v{t3}, 3, v{t2}
        v_add_u32 v{vQw}, s{sT0}, v{t2}
        v_lshlrev_b32 v{t2}, 4, v{t0}
        v_add_u32 v{vStatR}, {STAT}, v{t2}
        s_lshl_b32 s{sT0}, s{sW}, 2
        v_add_u32 v{vStatW}, s{sT0}, v{vStatR}
        s_lshl_b32 s{sT0}, s{sW}, 10
        v_add_u32 v{vStA0}, s{sT0}, v{vL0}
        v_add_u32 v{vStA1}, 4096, v{vStA0}
        v_lshl_add_u32 v{t2}, v{t1}, 3, v{t0}
        v_lshlrev_b32 v{t2}, 3, v{t2}
        s_lshl_b32 s{sT0}, s{sW}, 8
        s_add_u32 s{sT0}, s{sT0}, 57344
        v_add_u32 v{t2}, s{sT0}, v{t2}
        v_lshrrev_b32 v{t3}, 3, v{t0}
        v_lshl_add_u32 v{vStB}, v{t3}, 30, v{t2}
        """)

    def x_loads(self, half):
        out = []
        tag = f"x{half}"
        js = range(0, 4) if half == 0 else range(4, 7)
        for j in js:
            out += L(f"s_add_u32 m0, s{sXM}, {j*9216}")
            out += L(f"buffer_load_dwordx4 v{vdX0}, {SRD_X}, s{sSEG+j} offen lds", tag)
            out += L(f"s_add_u32 m0, s{sXM}, {j*9216+4096}")
            out += L(f"buffer_load_dwordx4 v{vdX1}, {SRD_X}, s{sSEG+j} offen lds", tag)
        if half == 0:
            out += L(f"""s_mul_i32 s{sSOFF}, s{sW}, 9216
            s_add_u32 m0, s{sSOFF}, {XB+8192}""")
            out += L(f"buffer_load_dwordx4 v{vdX8}, {SRD_X}, s94 offen lds", tag)
        else:
            out += L(f"""s_min_u32 s{sSOFF}, s{sW}, 2
            s_mul_i32 s{sSOFF}, s{sSOFF}, 9216
            s_add_u32 m0, s{sSOFF}, {XB+8192+4*9216}""")
            out += L(f"buffer_load_dwordx4 v{vdX8}, {SRD_X}, s95 offen lds", tag)
        return out

    def wo_place(self, j):
        return [("R", 2), ("R", 0), ("B", 0), ("A", 0), ("R", 2), ("R", 0), ("B", 0)][j]

    def load(self, c):
        tag = f"c{c}"
        pre = []
        if c < 46:
            m0 = f"s_add_u32 m0, s{sRING}, {(c % S)*4096}"
        if c < 14:
            vd, srd, so, pol = vdWq, SRD_WQ, f"s{sWQO+c}", ""
        elif c < 30:
            k = c - 14
            pre.append(f"s_xor_b32 s{sSOFF}, s{sKX}, {(k >> 1)*8192 + (k & 1)*256}")
            vd, srd, so, pol = vdK, SRD_K, f"s{sSOFF}", self.kvpol
        elif c < 46:
            k = c - 30
            pre.append(f"s_xor_b32 s{sSOFF}, s{sVX}, {k*16384}")
            vd, srd, so, pol = vdV, SRD_V, f"s{sSOFF}", self.kvpol
        else:
            j, ee = (c - 46) >> 1, (c - 46) & 1
            kind, base = self.wo_place(j)
            if kind == "R":
                m0 = f"s_add_u32 m0, s{sRING}, {(base+ee)*4096}"
            else:
                pre.append(f"s_lshl_b32 s{sT0}, s{sW}, 13")
                m0 = f"s_add_u32 m0, s{sT0}, {(40960 if kind == 'B' else 0) + ee*4096}"
            if ee:
                pre.append(f"s_add_u32 s{sSOFF}, s{sU+j}, {32*896}")
                so = f"s{sSOFF}"
            else:
                so = f"s{sU+j}"
            vd, srd, pol = vdWo, SRD_WO, ""
        groups = []
        for i in range(4):
            g = []
            if i == 0:
                if c >= 46:
                    g += L("\n".join(pre[:1] if self.wo_place((c - 46) >> 1)[0] != "R" else []))
                    g += L(m0)
                    g += L("\n".join(pre[1:] if self.wo_place((c - 46) >> 1)[0] != "R" else pre))
                else:
                    g += L(m0) + L("\n".join(pre))
            off = f" offset:{1024*i}" if i else ""
            g += L(f"buffer_load_dwordx4 v{vd+i}, {srd}, {so} offen{off} {pol} lds", tag)
            groups.append(g)
        return groups

    def alloc(self, key):
        assert self.free, f"no free fragment buffer for {key}"
        self.buf[key] = self.free.pop(0)
        return self.buf[key] * 16

    def release(self, key):
        self.free.append(self.buf.pop(key))

    def read(self, c):
        base = self.alloc(c)
        tag = f"r{c}"
        so = (c % S) * 4096
        out = []
        if 14 <= c < 30:
            for j in range(4):
                out += L(f"ds_read_b128 {a(base+4*j, 4)}, v{vrK+(j & 1)} offset:{so + (j >> 1)*2048}", tag)
        else:
            for nt in range(4):
                for hf in range(2):
                    out += L(f"ds_read_b64_tr_b16 {a(base+4*nt+2*hf, 2)}, v{vrT+nt} offset:{so + hf*2048}", tag)
        return out

    def pumpA(self, c):
        r = self.read(c)
        return [[wait_vm(f"c{c}"), r[0]]] + r[1:]

    def pumpB(self, c):
        if c + S >= 50:
            return []
        g = self.load(c + S)
        return [[wait_ds(f"r{c}")] + g[0]] + g[1:]

    def with_pumps(self, main, pumps, pre=None):
        n = len(pumps)
        out = main
        if pre:
            out = merge(out, pre, 0.0, 0.25)
        for i, c in enumerate(pumps):
            lo, hi = i / n, (i + 1) / n
            if pre and i == 0:
                lo = min(0.2, hi / 3)
            mid = lo + (hi - lo) * 0.45
            out = merge(out, self.pumpA(c), lo, mid)
            out = merge(out, self.pumpB(c), lo + (hi - lo) * 0.6, hi)
        return out

    def x_reads(self, ks):
        b = vACT + 20 * (ks & 1)
        return [I(f"ds_read_b128 {v(b+4*mt, 4)}, v{vrX+(ks & 1)} offset:{(ks >> 1)*9216 + mt*2048}") for mt in range(5)]

    def p_reads(self, kp):
        b = vACT + 20 * (kp & 1)
        out = []
        for mt in range(5):
            off = (kp * 5 + mt) * 1024
            r = vL0
            if off >= 40960:
                off -= 40960; r = vL1
            out.append(I(f"ds_read_b128 {v(b+4*mt, 4)}, v{r} offset:{off}"))
        return out

    def gemm_step(self, c, act, first):
        base = self.buf[c] * 16
        out = []
        for nt in range(4):
            for mt in range(5):
                d = v(vACC + (nt * 5 + mt) * 4, 4)
                out.append(mfma(d, a(base + 4 * nt, 4), v(act + 4 * mt, 4), "0" if first else d))
        return out

    def body(self):
        e = self.e
        cfg = self.cfg
        nxt = [0]

        def take(n):
            r = list(range(nxt[0], min(nxt[0] + n, 46)))
            nxt[0] += len(r)
            return r

        e([wait_vm("x0")]); e("s_barrier")
        e(self.stamp())
        e(self.x_reads(0))
        c = take(1)[0]
        e(self.pumpA(c)); e(self.pumpB(c))
        qp_p = cfg.get("qp_pumps", [1] * 14)
        for ks in range(14):
            main = self.gemm_step(ks, vACT + 20 * (ks & 1), ks == 0)
            if ks == 7:
                e([wait_vm("x1")]); e("s_barrier")
            pre = self.x_reads(ks + 1) if ks < 13 else None
            e(self.with_pumps(main, take(qp_p[ks]), pre))
            self.release(ks)
        e(self.stamp())
        qe = []
        for nt in range(4):
            for mt in range(5):
                d = vACC + (nt * 5 + mt) * 4
                t = vT + 2 * ((nt * 5 + mt) % 4)
                qe.append(L(f"""v_cvt_pk_bf16_f32 v{t}, v{d}, v{d+1}
                v_cvt_pk_bf16_f32 v{t+1}, v{d+2}, v{d+3}
                ds_write_b64 v{vQw}, {v(t, 2)} offset:{((nt >> 1)*5 + mt)*1024 + (nt & 1)*512}"""))
        e(self.with_pumps(qe, take(cfg.get("qe_pumps", 1))))
        e([wait_ds()]); e("s_barrier")
        qr = [I(f"ds_read_b128 {a((kq*5+mt)*4, 4)}, v{vL0} offset:{(kq*5+mt)*1024}") for kq in range(8) for mt in range(5)]
        e(qr[:20])
        e(self.stamp())
        vM = vT
        qk_p = cfg.get("qk_pumps", [1] * 16)

        def maxops(t):
            out = []
            for mt in range(5):
                s = vACC + (t * 5 + mt) * 4
                if t == 0:
                    out += L(f"""v_max3_f32 v{vM+mt}, v{s}, v{s+1}, v{s+2}
                    v_max_f32 v{vM+mt}, v{vM+mt}, v{s+3}""")
                else:
                    out += L(f"""v_max3_f32 v{vM+mt}, v{vM+mt}, v{s}, v{s+1}
                    v_max3_f32 v{vM+mt}, v{vM+mt}, v{s+2}, v{s+3}""")
            return out

        for k in range(16):
            c = 14 + k
            t, hf = k >> 1, k & 1
            base = self.buf[c] * 16
            main = []
            for j in range(4):
                kq = 4 * hf + j
                for mt in range(5):
                    d = v(vACC + (t * 5 + mt) * 4, 4)
                    main.append(mfma(d, a(base + 4 * j, 4), a((kq * 5 + mt) * 4, 4), "0" if kq == 0 else d))
            if k == 0:
                main = merge(main, qr[20:], 0.0, 1.0)
            if hf == 0 and t > 0:
                main = merge(main, maxops(t - 1), 0.4, 1.0)
            e(self.with_pumps(main, take(qk_p[k])))
            self.release(c)
        self.free += list(range(0, 10))
        e(self.stamp())
        sm = [[x] for x in maxops(7)]
        tA = vACT
        for op in ("v_permlane32_swap_b32", "v_permlane16_swap_b32"):
            sm.append(L("\n".join(f"v_mov_b32 v{tA+mt}, v{vM+mt}" for mt in range(5))))
            sm.append(L("\n".join(f"{op} v{tA+mt}, v{vM+mt}" for mt in range(5))))
            sm.append(L("\n".join(f"v_max_f32 v{vM+mt}, v{vM+mt}, v{tA+mt}" for mt in range(5))))
        sm.append(L("\n".join(f"ds_write_b32 v{vStatW}, v{vM+mt} offset:{mt*256}" for mt in range(5))))
        e(sm)
        e([wait_ds()]); e("s_barrier")
        e("\n".join(f"ds_read_b128 {v(tA+4*mt, 4)}, v{vStatR} offset:{mt*256}" for mt in range(5)))
        vNM = vT
        for mt in range(5):
            e(f"""v_max3_f32 v{tA+4*mt}, v{tA+4*mt}, v{tA+4*mt+1}, v{tA+4*mt+2}
            v_max_f32 v{tA+4*mt}, v{tA+4*mt}, v{tA+4*mt+3}""")
        for mt in range(5):
            e(f"v_mul_f32 v{vNM+2*mt}, 0xbdb8aa3b, v{tA+4*mt}")
        vSum = tA
        vPk = tA + 12
        sm = []
        for j in range(4):
            for mt in range(5):
                g = []
                regs = [vACC + ((2 * j + hh) * 5 + mt) * 4 for hh in range(2)]
                pk = vPk + 4 * ((j * 5 + mt) & 1)
                for s in regs:
                    for o in (0, 2):
                        g += L(f"v_pk_fma_f32 {v(s+o, 2)}, {v(s+o, 2)}, s[{sC}:{sC+1}], {v(vNM+2*mt, 2)} op_sel_hi:[1,1,0]")
                for s in regs:
                    for o in range(4):
                        g += L(f"v_exp_f32 v{s+o}, v{s+o}")
                first = (j == 0)
                if first:
                    g += L(f"v_pk_add_f32 {v(vSum+2*mt, 2)}, {v(regs[0], 2)}, {v(regs[0]+2, 2)}")
                else:
                    g += L(f"v_pk_add_f32 {v(vSum+2*mt, 2)}, {v(vSum+2*mt, 2)}, {v(regs[0], 2)}")
                g += L(f"v_cvt_pk_bf16_f32 v{pk}, v{regs[0]}, v{regs[0]+1}")
                if not first:
                    g += L(f"v_pk_add_f32 {v(vSum+2*mt, 2)}, {v(vSum+2*mt, 2)}, {v(regs[0]+2, 2)}")
                g += L(f"v_cvt_pk_bf16_f32 v{pk+1}, v{regs[0]+2}, v{regs[0]+3}")
                g += L(f"v_pk_add_f32 {v(vSum+2*mt, 2)}, {v(vSum+2*mt, 2)}, {v(regs[1], 2)}")
                g += L(f"v_cvt_pk_bf16_f32 v{pk+2}, v{regs[1]}, v{regs[1]+1}")
                g += L(f"v_pk_add_f32 {v(vSum+2*mt, 2)}, {v(vSum+2*mt, 2)}, {v(regs[1]+2, 2)}")
                g += L(f"v_cvt_pk_bf16_f32 v{pk+3}, v{regs[1]+2}, v{regs[1]+3}")
                g += L(f"ds_write_b128 v{vPw}, {v(pk, 4)} offset:{(j*5+mt)*1024}")
                sm += g
        e(self.with_pumps(sm, take(cfg.get("sm_pumps", 4))))
        vL = vT
        for mt in range(5):
            e(f"v_add_f32 v{vL+mt}, v{vSum+2*mt}, v{vSum+2*mt+1}")
        for op in ("v_permlane32_swap_b32", "v_permlane16_swap_b32"):
            e("\n".join(f"v_mov_b32 v{tA+mt}, v{vL+mt}" for mt in range(5)))
            e("\n".join(f"{op} v{tA+mt}, v{vL+mt}" for mt in range(5)))
            e("\n".join(f"v_add_f32 v{vL+mt}, v{vL+mt}, v{tA+mt}" for mt in range(5)))
        e("\n".join(f"ds_write_b32 v{vStatW}, v{vL+mt} offset:{2048+mt*256}" for mt in range(5)))
        e([wait_ds()]); e("s_barrier")
        e(self.stamp())
        e(self.p_reads(0))
        tS = vACC + 80
        rs = L("\n".join(f"ds_read_b128 {v(tS+4*mt, 4)}, v{vStatR} offset:{2048+mt*256}" for mt in range(5)))
        rs2 = []
        for mt in range(5):
            rs2 += L(f"""v_add_f32 v{tS+4*mt}, v{tS+4*mt}, v{tS+4*mt+1}
            v_add_f32 v{tS+4*mt+2}, v{tS+4*mt+2}, v{tS+4*mt+3}
            v_add_f32 v{tS+4*mt}, v{tS+4*mt}, v{tS+4*mt+2}
            v_rcp_f32 v{vT+2*mt}, v{tS+4*mt}""")
        rem = 46 - nxt[0]
        pv_p = cfg.get("pv_pumps")
        if pv_p is None:
            pv_p = [((k + 1) * rem) // 15 - (k * rem) // 15 for k in range(15)] + [0]
        for k in range(16):
            c = 30 + k
            while c not in self.buf:
                cc = take(1)[0]
                e(self.pumpA(cc)); e(self.pumpB(cc))
            main = self.gemm_step(c, vACT + 20 * (k & 1), k == 0)
            if k == 9:
                e("s_barrier")
            if k == 2:
                main = merge(main, rs, 0.3, 0.6)
            if k == 3:
                main = merge(main, rs2, 0.0, 1.0)
            pre = self.p_reads(k + 1) if k < 15 else None
            e(self.with_pumps(main, take(pv_p[k]), pre))
            self.release(c)
        assert nxt[0] == 46
        e(self.stamp())
        for j in range(2):
            for mt in range(5):
                pk = vACT + 4 * ((j * 5 + mt) % 4)
                for hh in range(2):
                    d = vACC + ((2 * j + hh) * 5 + mt) * 4
                    e(f"""v_pk_mul_f32 {v(d, 2)}, {v(d, 2)}, {v(vT+2*mt, 2)} op_sel_hi:[1,0]
                    v_pk_mul_f32 {v(d+2, 2)}, {v(d+2, 2)}, {v(vT+2*mt, 2)} op_sel_hi:[1,0]
                    v_cvt_pk_bf16_f32 v{pk+2*hh}, v{d}, v{d+1}
                    v_cvt_pk_bf16_f32 v{pk+2*hh+1}, v{d+2}, v{d+3}""")
                e(f"ds_write_b128 v{vOw}, {v(pk, 4)} offset:{(j*5+mt)*1024}")
        e([wait_vm("c47"), wait_ds()]); e("s_barrier")
        self.free = [x for x in self.free if x >= 10]
        assert len(self.free) == 6

        def wo_reads(j):
            kind, base = self.wo_place(j)
            b0 = self.alloc(("u", j, 0)); b1 = self.alloc(("u", j, 1))
            out = []
            for ko in range(8):
                dst = (b0 if ko < 4 else b1) + 4 * (ko & 3)
                for hf in range(2):
                    if kind == "R":
                        r, off = vrToR, (ko >> 1) * 16384 + (base + (ko & 1)) * 4096
                    else:
                        r, off = (vrToA if kind == "A" else vrToB), ko * 4096
                    out += L(f"ds_read_b64_tr_b16 {a(dst+2*hf, 2)}, v{r} offset:{off + hf*2048}", f"ru{j}")
            return out

        def wo_loads(j):
            return self.load(46 + 2 * j) + self.load(47 + 2 * j)

        orr = [I(f"ds_read_b128 {a((ko*5+mt)*4, 4)}, v{vL0} offset:{(ko*5+mt)*1024}", "ro") for ko in range(8) for mt in range(5)]
        w0 = wo_reads(0)
        first = []
        for ko in range(8):
            first += w0[2 * ko:2 * ko + 2] + orr[5 * ko:5 * ko + 5]
        e(first[:14])
        e(self.stamp())

        def epi(j):
            acc = vACC + 20 * j
            pk = vACT + 12 * (j & 1)
            out = []
            for mt in range(5):
                out += L(f"""v_cvt_pk_bf16_f32 v{pk+2*mt}, v{acc+4*mt}, v{acc+4*mt+1}
                v_cvt_pk_bf16_f32 v{pk+2*mt+1}, v{acc+4*mt+2}, v{acc+4*mt+3}""")
                if mt == 1:
                    out += L(f"buffer_store_dwordx4 {v(pk, 4)}, v{vStA0}, {SRD_P}, s{sSTA+j} offen {self.stpol}", "st")
                if mt == 3:
                    out += L(f"buffer_store_dwordx4 {v(pk+4, 4)}, v{vStA1}, {SRD_P}, s{sSTA+j} offen {self.stpol}", "st")
                if mt == 4:
                    out += L(f"buffer_store_dwordx2 {v(pk+8, 2)}, v{vStB}, {SRD_P}, s{sSTB+j} offen {self.stpol}", "st")
            return out

        loads_after = {0: [3, 4], 1: [5], 2: [6]}
        st_at = cfg.get("st_at", {1: [0], 2: [1], 3: [2], 4: [3], 5: [4], 6: [5]})
        for j in range(7):
            b = [self.buf[("u", j, 0)] * 16, self.buf[("u", j, 1)] * 16]
            main = []
            acc = vACC + 20 * j
            for ko in range(8):
                for mt in range(5):
                    d = v(acc + 4 * mt, 4)
                    main.append(mfma(d, a(b[ko >> 2] + 4 * (ko & 3), 4), a((ko * 5 + mt) * 4, 4), "0" if ko == 0 else d))
            if j == 0:
                main = merge(main, first[14:], 0.0, 0.6)
                main = merge(main, wo_loads(2), 0.0, 0.5)
                lo = 0.7
            else:
                lo = 0.1
            if j < 6:
                r = wo_reads(j + 1)
                sync = [wait_vm(f"c{47+2*(j+1)}"), wait_ds(), I("s_barrier")]
                main = merge(main, [sync + [r[0]]] + r[1:], lo, min(1.0, lo + 0.5))
                lds = []
                for u in loads_after.get(j, []):
                    lds += wo_loads(u)
                if lds:
                    main = merge(main, lds, lo + 0.02, 1.0)
            eps = []
            for jj in st_at.get(j, []):
                eps += epi(jj)
            if eps:
                main = merge(main, eps, 0.3, 0.95)
            e(main)
            self.release(("u", j, 0)); self.release(("u", j, 1))
        done = [jj for l in st_at.values() for jj in l]
        for jj in range(7):
            if jj not in done:
                e(epi(jj))
        e(self.stamp())
        if cfg.get("stamps"):
            e([wait_vm(None)])
            e(self.stamp())
            e(f"""
            s_cmp_lg_u32 s{sW}, {cfg.get('stampwave', 0)}
            s_cbranch_scc1 L_k1_end
            s_mul_i32 s{sT0}, s2, {NSTAMP*8}
            s_add_u32 s{sT0}, s{sT0}, {STAMP_OFF}
            s_add_u32 s24, s14, s{sT0}
            s_addc_u32 s25, s15, 0
            s_mov_b32 s26, {16*8}
            s_mov_b32 s27, 0x20000
            v_lshlrev_b32 v1, 3, v0
            buffer_store_dwordx2 v[{vSt0}:{vSt1}], v1, s[24:27], 0 offen
            """)
        if cfg.get("amp"):
            i0, i1 = cfg["amp"]
            e(f"""
            v_readlane_b32 s48, v{vSt0}, {i0}
            v_readlane_b32 s49, v{vSt0}, {i1}
            s_nop 3
            s_sub_u32 s49, s49, s48
            s_mul_i32 s49, s49, 50
            s_memrealtime s[50:51]
            s_waitcnt lgkmcnt(0)
            L_spin:
            s_memrealtime s[52:53]
            s_waitcnt lgkmcnt(0)
            s_sub_u32 s54, s52, s50
            s_cmp_lt_u32 s54, s49
            s_cbranch_scc1 L_spin
            """)
        e("L_k1_end:\ns_endpgm")

    def text(self):
        self.prologue()
        self.body()
        st = {}
        t = finalize(self.p, st)
        print("K1:", st, "stamps", self.nstamp, file=sys.stderr)
        return t


def k2_text(cfg):
    p = []
    e = lambda x: p.append(L(x) if isinstance(x, str) else x)
    stamps = cfg.get("stamps")
    e(f"""
    s_cmp_ge_u32 s2, 256
    s_cbranch_scc1 L_k2_end
    s_load_dwordx2 s[4:5], s[0:1], 40
    s_load_dwordx2 s[6:7], s[0:1], 56
    """)
    if stamps:
        e("s_memrealtime s[40:41]")
    e(f"""
    s_lshr_b32 s8, s2, 4
    s_and_b32 s9, s2, 15
    v_lshlrev_b32 v1, 4, v0
    s_mul_i32 s10, s8, {16*64512}
    s_lshl_b32 s11, s9, 12
    v_add_u32 v1, s11, v1
    s_waitcnt lgkmcnt(0)
    s_add_u32 s12, s6, s10
    s_addc_u32 s13, s7, 0
    s_mov_b32 s14, {16*64512}
    s_mov_b32 s15, 0x20000
    """)
    for h in range(16):
        e(f"s_mov_b32 s11, {h*64512}")
        e(f"buffer_load_dwordx4 {v(8+4*h, 4)}, v1, s[12:15], s11 offen {cfg.get('k2pol', '')}")
    e(f"""
    s_mul_i32 s10, s8, 64512
    s_add_u32 s16, s4, s10
    s_addc_u32 s17, s5, 0
    s_mov_b32 s18, 64512
    s_mov_b32 s19, 0x20000
    s_cmp_ge_u32 s9, 14
    s_cbranch_scc1 L_k2_typeB
    s_lshr_b32 s10, s9, 1
    s_and_b32 s11, s9, 1
    s_lshl_b32 s10, s10, 7
    s_mul_i32 s11, s11, {32*896}
    s_add_u32 s10, s10, s11
    v_and_b32 v2, 15, v0
    v_mul_u32_u24 v2, 896, v2
    v_lshrrev_b32 v3, 4, v0
    v_lshl_add_u32 v2, v3, 3, v2
    v_add_u32 v2, s10, v2
    v_add_u32 v3, {16*896}, v2
    s_branch L_k2_sum
    L_k2_typeB:
    s_sub_u32 s10, s9, 14
    s_lshl_b32 s10, s10, 9
    s_add_u32 s10, s10, {64*896}
    v_and_b32 v2, 3, v0
    v_mul_u32_u24 v2, {2*896}, v2
    v_lshrrev_b32 v3, 2, v0
    v_lshl_add_u32 v2, v3, 3, v2
    v_add_u32 v2, s10, v2
    s_cmp_eq_u32 s9, 15
    s_cselect_b32 s11, 192, -1
    v_cmp_le_u32 vcc, s11, v0
    v_mov_b32 v4, 0x40000000
    v_cndmask_b32 v2, v2, v4, vcc
    v_add_u32 v3, 896, v2
    L_k2_sum:
    s_mov_b32 s20, 0xffff0000
    """)
    acc = 72
    for h in range(16):
        for d in range(4):
            r = 8 + 4 * h + d
            if h == 0:
                e(f"""v_lshlrev_b32 v{acc+2*d}, 16, v{r}
                v_and_b32 v{acc+2*d+1}, s20, v{r}""")
            else:
                e(f"""v_lshlrev_b32 v4, 16, v{r}
                v_and_b32 v5, s20, v{r}
                v_pk_add_f32 {v(acc+2*d, 2)}, {v(acc+2*d, 2)}, v[4:5]""")
    if stamps:
        e("s_memrealtime s[42:43]")
    for d in range(4):
        e(f"v_cvt_pk_bf16_f32 v{8+d}, v{acc+2*d}, v{acc+2*d+1}")
    e("""
    buffer_store_dwordx2 v[8:9], v2, s[16:19], 0 offen
    buffer_store_dwordx2 v[10:11], v3, s[16:19], 0 offen
    """)
    if stamps:
        e(f"""
        s_waitcnt vmcnt(0)
        s_memrealtime s[44:45]
        s_waitcnt lgkmcnt(0)
        s_mul_i32 s10, s2, {NSTAMP*8}
        s_add_u32 s10, s10, {STAMP_OFF + 16*8}
        s_add_u32 s24, s6, s10
        s_addc_u32 s25, s7, 0
        s_mov_b32 s26, 24
        s_mov_b32 s27, 0x20000
        v_writelane_b32 v6, s40, 0
        v_writelane_b32 v7, s41, 0
        v_writelane_b32 v6, s42, 1
        v_writelane_b32 v7, s43, 1
        v_writelane_b32 v6, s44, 2
        v_writelane_b32 v7, s45, 2
        v_lshlrev_b32 v1, 3, v0
        buffer_store_dwordx2 v[6:7], v1, s[24:27], 0 offen
        """)
    e("L_k2_end:\ns_endpgm")
    return finalize(p)


def gen(cfg):
    k1 = K1(cfg).text()
    k2 = k2_text(cfg)
    return build_file([("mha_fused_kernel", k1, 512, 102, 256), ("mha_reduce_kernel", k2, 80, 48, 80)],
                      [("mha_fused_kernel", 256, 256, LDS_BYTES), ("mha_reduce_kernel", 256, 256, 0)])


if __name__ == "__main__":
    cfg = eval(sys.argv[2]) if len(sys.argv) > 2 else {}
    open(sys.argv[1], "w").write(gen(cfg))
```

```python
import sys
from asmlib import *
from ir import *

STAMP_OFF = 200 << 20
NSTAMP = 32

XB = 16384
RING = 81920
STAT = 147456
LDS_BYTES = 163840
S = 4
KBIAS = 2048

sW = 3
sB, sH, sQH, sG = 16, 17, 18, 19
SRD_X, SRD_K, SRD_V, SRD_WQ, SRD_WO, SRD_P = "s[24:27]", "s[28:31]", "s[32:35]", "s[36:39]", "s[40:43]", "s[44:47]"
sSEG = 48
sWQO = 56
sU = 70
sSTA = 77
sSTB = 84
sT0, sT1, sT2 = 20, 21, 22
sSOFF = 91
sKX = 92
sVX = 93
sC = 96
sRING = 98
sXM = 99

vLane = 0
vdX0, vdX1, vdX8 = 2, 3, 4
vdWq, vdK, vdV, vdWo = 5, 9, 13, 17
vrT = 21
vrToR, vrToA, vrToB = 25, 26, 27
vrX, vrK = 28, 30
vL0, vL1 = 32, 33
vQw, vPw, vOw = 34, 35, 36
vStatW, vStatR = 37, 38
vStA0, vStA1, vStB = 39, 40, 41
vSt0, vSt1 = 42, 43
vPr0, vPr1 = 44, 45
vT = 46
vACT = 56
vACC = 96


def v(r, n=1):
    return f"v{r}" if n == 1 else f"v[{r}:{r+n-1}]"


def a(r, n=1):
    return f"a{r}" if n == 1 else f"a[{r}:{r+n-1}]"


def mfma(d, A, B, c):
    return I(f"v_mfma_f32_16x16x32_bf16 {d}, {A}, {B}, {c}")


class K1:
    def __init__(self, cfg):
        self.cfg = cfg
        self.p = []
        self.free = list(range(10, 16))
        self.buf = {}
        self.nstamp = 0
        self.kvpol = cfg.get("kvpol", "")
        self.stpol = cfg.get("stpol", "")

    def e(self, x):
        self.p.append(L(x) if isinstance(x, str) else x)

    def stamp(self):
        if not self.cfg.get("stamps"):
            return []
        i = self.nstamp; self.nstamp += 1
        clk = self.cfg.get("clk", "s_memrealtime")
        return L(f"""{clk} s[100:101]
        s_waitcnt lgkmcnt(0)
        v_writelane_b32 v{vSt0}, s100, {i}
        v_writelane_b32 v{vSt1}, s101, {i}""")

    def prologue(self):
        e = self.e
        e(f"""
        s_cmp_ge_u32 s2, 256
        s_cbranch_scc1 L_k1_end
        s_load_dwordx8 s[4:11], s[0:1], 0
        s_load_dwordx2 s[12:13], s[0:1], 32
        s_load_dwordx2 s[14:15], s[0:1], 56
        v_lshrrev_b32 v1, 6, v0
        v_and_b32 v0, 63, v0
        v_readfirstlane_b32 s{sW}, v1
        s_and_b32 s{sT0}, s2, 7
        s_lshr_b32 s{sT1}, s2, 3
        s_and_b32 s{sT2}, s{sT1}, 1
        s_lshl_b32 s{sH}, s{sT0}, 1
        s_add_u32 s{sH}, s{sH}, s{sT2}
        s_lshr_b32 s{sG}, s{sT1}, 1
        s_and_b32 s{sQH}, s{sG}, 1
        s_lshr_b32 s{sB}, s{sG}, 1
        """)
        e(self.stamp())
        e(f"""
        s_mul_i32 s{sT0}, s{sG}, 7
        s_lshr_b32 s{sT1}, s{sT0}, 3
        s_mul_i32 s{sT2}, s{sT2}, 7
        s_add_u32 s{sT1}, s{sT1}, s{sT2}
        s_cmp_ge_u32 s{sT1}, 14
        s_cselect_b32 s{sT2}, 14, 0
        s_sub_u32 s{sT1}, s{sT1}, s{sT2}
        s_and_b32 s55, s{sT1}, 1
        s_lshr_b32 s{sT1}, s{sT1}, 1
        s_lshr_b32 s23, s{sT0}, 4
        """)
        for j in range(7):
            e(f"""
            s_add_u32 s{sT2}, s{sT1}, {j}
            s_cmp_ge_u32 s{sT2}, 7
            s_cselect_b32 s{sT0}, 7, 0
            s_sub_u32 s{sT2}, s{sT2}, s{sT0}
            s_lshl_b32 s{sSEG+j}, s{sT2}, 7
            """)
        t0, t1, t2, t3, t4 = vT, vT + 1, vT + 2, vT + 3, vT + 4
        e(f"""
        v_lshrrev_b32 v{t0}, 3, v0
        v_and_b32 v{t1}, 7, v0
        v_and_b32 v{t2}, 6, v{t0}
        v_xor_b32 v{t1}, v{t1}, v{t2}
        v_lshlrev_b32 v{t1}, 4, v{t1}
        v_mul_u32_u24 v{t2}, 896, v{t0}
        v_add_u32 v{t2}, v{t2}, v{t1}
        s_mul_i32 s{sT0}, s{sW}, {8*896}
        v_add_u32 v{vdX0}, s{sT0}, v{t2}
        v_add_u32 v{vdX1}, {32*896}, v{vdX0}
        v_add_u32 v{vdX8}, {64*896}, v{t2}
        s_lshl_b32 s{sXM}, s{sW}, 10
        s_add_u32 s{sXM}, s{sXM}, {XB}
        s_lshl_b32 s{sRING}, s{sW}, 14
        s_add_u32 s{sRING}, s{sRING}, {RING}
        s_waitcnt lgkmcnt(0)
        s_mul_i32 s{sT0}, s{sG}, 64512
        s_add_u32 s24, s4, s{sT0}
        s_addc_u32 s25, s5, 0
        s_mov_b32 s26, 64512
        s_mov_b32 s27, 0x20000
        """)
        e(f"""
        s_add_u32 s{sT2}, s{sT1}, s{sW}
        s_cmp_ge_u32 s{sT2}, 7
        s_cselect_b32 s{sT0}, 7, 0
        s_sub_u32 s{sT2}, s{sT2}, s{sT0}
        s_lshl_b32 s94, s{sT2}, 7
        s_min_u32 s{sT0}, s{sW}, 2
        s_add_u32 s{sT2}, s{sT1}, s{sT0}
        s_add_u32 s{sT2}, s{sT2}, 4
        s_cmp_ge_u32 s{sT2}, 7
        s_cselect_b32 s{sT0}, 7, 0
        s_sub_u32 s{sT2}, s{sT2}, s{sT0}
        s_lshl_b32 s95, s{sT2}, 7
        """)
        e(self.x_loads(0))
        e(f"""
        s_lshl_b32 s{sT0}, s{sH}, 9
        s_add_u32 s36, s10, s{sT0}
        s_addc_u32 s37, s11, 0
        s_sub_u32 s38, 3670016, s{sT0}
        s_mov_b32 s39, 0x20000
        v_and_b32 v{t3}, 3, v{t0}
        v_lshrrev_b32 v{t4}, 2, v{t0}
        v_lshl_add_u32 v{t3}, v{t4}, 3, v{t3}
        v_lshl_add_u32 v{t3}, v{t3}, 13, v{t1}
        s_lshl_b32 s{sT0}, s{sW}, 7
        v_add_u32 v{vdWq}, s{sT0}, v{t3}
        v_add_u32 v{vdWq+1}, {16*8192-1024}, v{vdWq}
        v_add_u32 v{vdWq+2}, {4*8192-2048}, v{vdWq}
        v_add_u32 v{vdWq+3}, {20*8192-3072}, v{vdWq}
        s_lshl_b32 s{sT2}, s55, 18
        """)
        for ks in range(14):
            if ks % 2 == 0:
                e(f"""s_lshl_b32 s{sWQO+ks}, s{sSEG+ks//2}, 12
                s_add_u32 s{sWQO+ks}, s{sWQO+ks}, s{sT2}""")
            else:
                e(f"s_xor_b32 s{sWQO+ks}, s{sWQO+ks-1}, {1<<18}")
        order = self.cfg.get("first", ["L0", "L1", "X1", "L2", "L3"])
        for o in order[:2]:
            e(self.x_loads(1) if o == "X1" else self.load(int(o[1:])))
        e(f"""
        s_lshl_b32 s{sT0}, s{sB}, 4
        s_add_u32 s{sT0}, s{sT0}, s{sH}
        s_lshl_b32 s{sT0}, s{sT0}, 18
        s_add_u32 s28, s6, s{sT0}
        s_addc_u32 s29, s7, 0
        s_sub_u32 s28, s28, {KBIAS}
        s_subb_u32 s29, s29, 0
        s_mov_b32 s30, {262144+KBIAS}
        s_mov_b32 s31, 0x20000
        s_add_u32 s32, s8, s{sT0}
        s_addc_u32 s33, s9, 0
        s_mov_b32 s34, 262144
        s_mov_b32 s35, 0x20000
        s_mul_i32 s{sT0}, s{sH}, 229376
        s_add_u32 s40, s12, s{sT0}
        s_addc_u32 s41, s13, 0
        s_mov_b32 s42, 229376
        s_mov_b32 s43, 0x20000
        s_lshl_b32 s{sT0}, s{sG}, 4
        s_add_u32 s{sT0}, s{sT0}, s{sH}
        s_mul_i32 s{sT0}, s{sT0}, 64512
        s_add_u32 s44, s14, s{sT0}
        s_addc_u32 s45, s15, 0
        s_mov_b32 s46, 64512
        s_mov_b32 s47, 0x20000
        s_mul_i32 s{sKX}, s{sQH}, {self.cfg.get('kswap', 0)*8192}
        s_mul_i32 s{sVX}, s{sQH}, {self.cfg.get('vswap', 0)*16384}
        s_mov_b32 s{sC}, 0x3db8aa3b
        s_mov_b32 s{sC+1}, 0x3db8aa3b
        """)
        for o in order[2:]:
            e(self.x_loads(1) if o == "X1" else self.load(int(o[1:])))
        e(f"""
        v_lshl_add_u32 v{t3}, v{t0}, 9, v{t1}
        s_lshl_b32 s{sT0}, s{sW}, 16
        s_add_u32 s{sT0}, s{sT0}, {KBIAS}
        v_add_u32 v{vdK}, s{sT0}, v{t3}
        v_add_u32 v{vdK+1}, {4096-1024}, v{vdK}
        v_subrev_u32 v{vdK+2}, {2048-128}, v{vdK}
        v_add_u32 v{vdK+3}, {4096+128-3072}, v{vdK}
        s_lshl_b32 s{sT0}, s{sW}, 7
        v_add_u32 v{vdV}, s{sT0}, v{t3}
        v_add_u32 v{vdV+1}, {1*3072}, v{vdV}
        v_add_u32 v{vdV+2}, {2*3072}, v{vdV}
        v_add_u32 v{vdV+3}, {3*3072}, v{vdV}
        s_mul_i32 s{sT0}, s{sW}, {64*896}
        v_add_u32 v{vdWo}, s{sT0}, v{t2}
        v_add_u32 v{vdWo+1}, {1*6144}, v{vdWo}
        v_add_u32 v{vdWo+2}, {2*6144}, v{vdWo}
        v_add_u32 v{vdWo+3}, {3*6144}, v{vdWo}
        """)
        for j in range(7):
            e(f"""
            s_add_u32 s{sT2}, s23, {j}
            s_cmp_ge_u32 s{sT2}, 7
            s_cselect_b32 s{sT0}, 7, 0
            s_sub_u32 s{sT2}, s{sT2}, s{sT0}
            s_lshl_b32 s{sU+j}, s{sT2}, 7
            s_lshl_b32 s{sSTA+j}, s{sT2}, 13
            s_lshl_b32 s{sSTB+j}, s{sT2}, 10
            """)
        e(f"""
        v_lshrrev_b32 v{t0}, 2, v0
        v_bfe_u32 v{t1}, v0, 3, 2
        v_and_b32 v{t2}, 3, v0
        v_lshlrev_b32 v{t2}, 3, v{t2}
        v_lshl_add_u32 v{t2}, v{t0}, 7, v{t2}
        v_lshlrev_b32 v{t1}, 5, v{t1}
        v_add_u32 v{t3}, v{t2}, v{t1}
        v_add_u32 v{vrT}, s{sRING}, v{t3}
        v_xor_b32 v{vrT+1}, 32, v{vrT}
        v_xor_b32 v{vrT+2}, 64, v{vrT}
        v_xor_b32 v{vrT+3}, 96, v{vrT}
        s_lshl_b32 s{sT0}, s{sW}, 5
        v_xor_b32 v{vrToA}, s{sT0}, v{t3}
        v_add_u32 v{vrToR}, {RING}, v{vrToA}
        v_add_u32 v{vrToB}, 40960, v{vrToA}
        """)
        e(f"""
        v_and_b32 v{t0}, 15, v0
        v_lshrrev_b32 v{t1}, 4, v0
        v_and_b32 v{t2}, 6, v0
        v_xor_b32 v{t2}, v{t2}, v{t1}
        v_lshlrev_b32 v{t2}, 4, v{t2}
        v_lshl_add_u32 v{t2}, v{t0}, 7, v{t2}
        v_add_u32 v{vrK}, s{sRING}, v{t2}
        v_xor_b32 v{vrK+1}, 64, v{vrK}
        s_lshl_b32 s{sT0}, s55, 6
        v_xor_b32 v{t2}, s{sT0}, v{t2}
        v_add_u32 v{vrX}, {XB}, v{t2}
        v_xor_b32 v{vrX+1}, 64, v{vrX}
        v_lshlrev_b32 v{vL0}, 4, v0
        v_add_u32 v{vL1}, 40960, v{vL0}
        s_mul_i32 s{sT0}, s{sW}, 10240
        v_add_u32 v{vOw}, s{sT0}, v{vL0}
        v_add_u32 v{vPw}, s{sT0}, v{vOw}
        v_lshrrev_b32 v{t2}, 1, v{t1}
        v_lshlrev_b32 v{t2}, 8, v{t2}
        v_lshl_add_u32 v{t2}, v{t0}, 4, v{t2}
        v_and_b32 v{t3}, 1, v{t1}
        v_lshl_add_u32 v{t2}, v{t3}, 3, v{t2}
        v_add_u32 v{vQw}, s{sT0}, v{t2}
        v_lshlrev_b32 v{t2}, 4, v{t0}
        v_add_u32 v{vStatR}, {STAT}, v{t2}
        s_lshl_b32 s{sT0}, s{sW}, 2
        v_add_u32 v{vStatW}, s{sT0}, v{vStatR}
        s_lshl_b32 s{sT0}, s{sW}, 10
        v_add_u32 v{vStA0}, s{sT0}, v{vL0}
        v_add_u32 v{vStA1}, 4096, v{vStA0}
        v_lshl_add_u32 v{t2}, v{t1}, 3, v{t0}
        v_lshlrev_b32 v{t2}, 3, v{t2}
        s_lshl_b32 s{sT0}, s{sW}, 8
        s_add_u32 s{sT0}, s{sT0}, 57344
        v_add_u32 v{t2}, s{sT0}, v{t2}
        v_lshrrev_b32 v{t3}, 3, v{t0}
        v_lshl_add_u32 v{vStB}, v{t3}, 30, v{t2}
        """)

    def x_loads(self, half):
        out = []
        tag = f"x{half}"
        js = range(0, 4) if half == 0 else range(4, 7)
        for j in js:
            out += L(f"s_add_u32 m0, s{sXM}, {j*9216}")
            out += L(f"buffer_load_dwordx4 v{vdX0}, {SRD_X}, s{sSEG+j} offen lds", tag)
            out += L(f"s_add_u32 m0, s{sXM}, {j*9216+4096}")
            out += L(f"buffer_load_dwordx4 v{vdX1}, {SRD_X}, s{sSEG+j} offen lds", tag)
        if half == 0:
            out += L(f"""s_mul_i32 s{sSOFF}, s{sW}, 9216
            s_add_u32 m0, s{sSOFF}, {XB+8192}""")
            out += L(f"buffer_load_dwordx4 v{vdX8}, {SRD_X}, s94 offen lds", tag)
        else:
            out += L(f"""s_min_u32 s{sSOFF}, s{sW}, 2
            s_mul_i32 s{sSOFF}, s{sSOFF}, 9216
            s_add_u32 m0, s{sSOFF}, {XB+8192+4*9216}""")
            out += L(f"buffer_load_dwordx4 v{vdX8}, {SRD_X}, s95 offen lds", tag)
        return out

    def wo_place(self, j):
        return [("R", 2), ("R", 0), ("B", 0), ("A", 0), ("R", 2), ("R", 0), ("B", 0)][j]

    def load(self, c):
        tag = f"c{c}"
        pre = []
        if c < 46:
            m0 = f"s_add_u32 m0, s{sRING}, {(c % S)*4096}"
        if c < 14:
            vd, srd, so, pol = vdWq, SRD_WQ, f"s{sWQO+c}", ""
        elif c < 30:
            k = c - 14
            pre.append(f"s_xor_b32 s{sSOFF}, s{sKX}, {(k >> 1)*8192 + (k & 1)*256}")
            vd, srd, so, pol = vdK, SRD_K, f"s{sSOFF}", self.kvpol
        elif c < 46:
            k = c - 30
            pre.append(f"s_xor_b32 s{sSOFF}, s{sVX}, {k*16384}")
            vd, srd, so, pol = vdV, SRD_V, f"s{sSOFF}", self.kvpol
        else:
            j, ee = (c - 46) >> 1, (c - 46) & 1
            kind, base = self.wo_place(j)
            if kind == "R":
                m0 = f"s_add_u32 m0, s{sRING}, {(base+ee)*4096}"
            else:
                pre.append(f"s_lshl_b32 s{sT0}, s{sW}, 13")
                m0 = f"s_add_u32 m0, s{sT0}, {(40960 if kind == 'B' else 0) + ee*4096}"
            if ee:
                pre.append(f"s_add_u32 s{sSOFF}, s{sU+j}, {32*896}")
                so = f"s{sSOFF}"
            else:
                so = f"s{sU+j}"
            vd, srd, pol = vdWo, SRD_WO, ""
        groups = []
        for i in range(4):
            g = []
            if i == 0:
                if c >= 46:
                    g += L("\n".join(pre[:1] if self.wo_place((c - 46) >> 1)[0] != "R" else []))
                    g += L(m0)
                    g += L("\n".join(pre[1:] if self.wo_place((c - 46) >> 1)[0] != "R" else pre))
                else:
                    g += L(m0) + L("\n".join(pre))
            off = f" offset:{1024*i}" if i else ""
            g += L(f"buffer_load_dwordx4 v{vd+i}, {srd}, {so} offen{off} {pol} lds", tag)
            groups.append(g)
        return groups

    def alloc(self, key):
        assert self.free, f"no free fragment buffer for {key}"
        self.buf[key] = self.free.pop(0)
        return self.buf[key] * 16

    def release(self, key):
        self.free.append(self.buf.pop(key))

    def read(self, c):
        base = self.alloc(c)
        tag = f"r{c}"
        so = (c % S) * 4096
        out = []
        if 14 <= c < 30:
            for j in range(4):
                out += L(f"ds_read_b128 {a(base+4*j, 4)}, v{vrK+(j & 1)} offset:{so + (j >> 1)*2048}", tag)
        else:
            for nt in range(4):
                for hf in range(2):
                    out += L(f"ds_read_b64_tr_b16 {a(base+4*nt+2*hf, 2)}, v{vrT+nt} offset:{so + hf*2048}", tag)
        return out

    def pumpA(self, c):
        r = self.read(c)
        return [[wait_vm(f"c{c}"), r[0]]] + r[1:]

    def pumpB(self, c):
        if c + S >= 50:
            return []
        g = self.load(c + S)
        return [[wait_ds(f"r{c}")] + g[0]] + g[1:]

    def with_pumps(self, main, pumps, pre=None):
        n = len(pumps)
        out = main
        if pre:
            out = merge(out, pre, 0.0, 0.25)
        for i, c in enumerate(pumps):
            lo, hi = i / n, (i + 1) / n
            if pre and i == 0:
                lo = min(0.2, hi / 3)
            mid = lo + (hi - lo) * 0.45
            out = merge(out, self.pumpA(c), lo, mid)
            out = merge(out, self.pumpB(c), lo + (hi - lo) * 0.6, hi)
        return out

    def x_reads(self, ks):
        b = vACT + 20 * (ks & 1)
        return [I(f"ds_read_b128 {v(b+4*mt, 4)}, v{vrX+(ks & 1)} offset:{(ks >> 1)*9216 + mt*2048}") for mt in range(5)]

    def p_reads(self, kp):
        b = vACT + 20 * (kp & 1)
        out = []
        for mt in range(5):
            off = (kp * 5 + mt) * 1024
            r = vL0
            if off >= 40960:
                off -= 40960; r = vL1
            out.append(I(f"ds_read_b128 {v(b+4*mt, 4)}, v{r} offset:{off}"))
        return out

    def gemm_step(self, c, act, first):
        base = self.buf[c] * 16
        out = []
        for nt in range(4):
            for mt in range(5):
                d = v(vACC + (nt * 5 + mt) * 4, 4)
                out.append(mfma(d, a(base + 4 * nt, 4), v(act + 4 * mt, 4), "0" if first else d))
        return out

    def body(self):
        e = self.e
        cfg = self.cfg
        nxt = [0]

        def take(n):
            r = list(range(nxt[0], min(nxt[0] + n, 46)))
            nxt[0] += len(r)
            return r

        e([wait_vm("x0")]); e("s_barrier")
        e(self.stamp())
        e(self.x_reads(0))
        c = take(1)[0]
        e(self.pumpA(c)); e(self.pumpB(c))
        qp_p = cfg.get("qp_pumps", [1] * 14)
        for ks in range(14):
            main = self.gemm_step(ks, vACT + 20 * (ks & 1), ks == 0)
            if ks == 7:
                e([wait_vm("x1")]); e("s_barrier")
            pre = self.x_reads(ks + 1) if ks < 13 else None
            e(self.with_pumps(main, take(qp_p[ks]), pre))
            self.release(ks)
        e(self.stamp())
        qe = []
        for nt in range(4):
            for mt in range(5):
                d = vACC + (nt * 5 + mt) * 4
                t = vT + 2 * ((nt * 5 + mt) % 4)
                qe.append(L(f"""v_cvt_pk_bf16_f32 v{t}, v{d}, v{d+1}
                v_cvt_pk_bf16_f32 v{t+1}, v{d+2}, v{d+3}
                ds_write_b64 v{vQw}, {v(t, 2)} offset:{((nt >> 1)*5 + mt)*1024 + (nt & 1)*512}"""))
        e(self.with_pumps(qe, take(cfg.get("qe_pumps", 1))))
        e([wait_ds()]); e("s_barrier")
        qr = [I(f"ds_read_b128 {a((kq*5+mt)*4, 4)}, v{vL0} offset:{(kq*5+mt)*1024}") for kq in range(8) for mt in range(5)]
        e(qr[:20])
        e(self.stamp())
        vM = vT
        qk_p = cfg.get("qk_pumps", [1] * 16)

        def maxops(t):
            out = []
            for mt in range(5):
                s = vACC + (t * 5 + mt) * 4
                if t == 0:
                    out += L(f"""v_max3_f32 v{vM+mt}, v{s}, v{s+1}, v{s+2}
                    v_max_f32 v{vM+mt}, v{vM+mt}, v{s+3}""")
                else:
                    out += L(f"""v_max3_f32 v{vM+mt}, v{vM+mt}, v{s}, v{s+1}
                    v_max3_f32 v{vM+mt}, v{vM+mt}, v{s+2}, v{s+3}""")
            return out

        for k in range(16):
            c = 14 + k
            t, hf = k >> 1, k & 1
            base = self.buf[c] * 16
            main = []
            for j in range(4):
                kq = 4 * hf + j
                for mt in range(5):
                    d = v(vACC + (t * 5 + mt) * 4, 4)
                    main.append(mfma(d, a(base + 4 * j, 4), a((kq * 5 + mt) * 4, 4), "0" if kq == 0 else d))
            if k == 0:
                main = merge(main, qr[20:], 0.0, 1.0)
            if hf == 0 and t > 0:
                main = merge(main, maxops(t - 1), 0.4, 1.0)
            e(self.with_pumps(main, take(qk_p[k])))
            self.release(c)
        self.free += list(range(0, 10))
        e(self.stamp())
        sm = [[x] for x in maxops(7)]
        tA = vACT
        for op in ("v_permlane32_swap_b32", "v_permlane16_swap_b32"):
            sm.append(L("\n".join(f"v_mov_b32 v{tA+mt}, v{vM+mt}" for mt in range(5))))
            sm.append(L("\n".join(f"{op} v{tA+mt}, v{vM+mt}" for mt in range(5))))
            sm.append(L("\n".join(f"v_max_f32 v{vM+mt}, v{vM+mt}, v{tA+mt}" for mt in range(5))))
        sm.append(L("\n".join(f"ds_write_b32 v{vStatW}, v{vM+mt} offset:{mt*256}" for mt in range(5))))
        e(sm)
        e([wait_ds()]); e("s_barrier")
        e("\n".join(f"ds_read_b128 {v(tA+4*mt, 4)}, v{vStatR} offset:{mt*256}" for mt in range(5)))
        vNM = vT
        for mt in range(5):
            e(f"""v_max3_f32 v{tA+4*mt}, v{tA+4*mt}, v{tA+4*mt+1}, v{tA+4*mt+2}
            v_max_f32 v{tA+4*mt}, v{tA+4*mt}, v{tA+4*mt+3}""")
        for mt in range(5):
            e(f"v_mul_f32 v{vNM+2*mt}, 0xbdb8aa3b, v{tA+4*mt}")
        vSum = tA
        vPk = tA + 12
        sm = []
        for j in range(4):
            for mt in range(5):
                g = []
                regs = [vACC + ((2 * j + hh) * 5 + mt) * 4 for hh in range(2)]
                pk = vPk + 4 * ((j * 5 + mt) & 1)
                for s in regs:
                    for o in (0, 2):
                        g += L(f"v_pk_fma_f32 {v(s+o, 2)}, {v(s+o, 2)}, s[{sC}:{sC+1}], {v(vNM+2*mt, 2)} op_sel_hi:[1,1,0]")
                for s in regs:
                    for o in range(4):
                        g += L(f"v_exp_f32 v{s+o}, v{s+o}")
                first = (j == 0)
                if first:
                    g += L(f"v_pk_add_f32 {v(vSum+2*mt, 2)}, {v(regs[0], 2)}, {v(regs[0]+2, 2)}")
                else:
                    g += L(f"v_pk_add_f32 {v(vSum+2*mt, 2)}, {v(vSum+2*mt, 2)}, {v(regs[0], 2)}")
                g += L(f"v_cvt_pk_bf16_f32 v{pk}, v{regs[0]}, v{regs[0]+1}")
                if not first:
                    g += L(f"v_pk_add_f32 {v(vSum+2*mt, 2)}, {v(vSum+2*mt, 2)}, {v(regs[0]+2, 2)}")
                g += L(f"v_cvt_pk_bf16_f32 v{pk+1}, v{regs[0]+2}, v{regs[0]+3}")
                g += L(f"v_pk_add_f32 {v(vSum+2*mt, 2)}, {v(vSum+2*mt, 2)}, {v(regs[1], 2)}")
                g += L(f"v_cvt_pk_bf16_f32 v{pk+2}, v{regs[1]}, v{regs[1]+1}")
                g += L(f"v_pk_add_f32 {v(vSum+2*mt, 2)}, {v(vSum+2*mt, 2)}, {v(regs[1]+2, 2)}")
                g += L(f"v_cvt_pk_bf16_f32 v{pk+3}, v{regs[1]+2}, v{regs[1]+3}")
                g += L(f"ds_write_b128 v{vPw}, {v(pk, 4)} offset:{(j*5+mt)*1024}")
                sm += g
        e(self.with_pumps(sm, take(cfg.get("sm_pumps", 4))))
        vL = vT
        for mt in range(5):
            e(f"v_add_f32 v{vL+mt}, v{vSum+2*mt}, v{vSum+2*mt+1}")
        for op in ("v_permlane32_swap_b32", "v_permlane16_swap_b32"):
            e("\n".join(f"v_mov_b32 v{tA+mt}, v{vL+mt}" for mt in range(5)))
            e("\n".join(f"{op} v{tA+mt}, v{vL+mt}" for mt in range(5)))
            e("\n".join(f"v_add_f32 v{vL+mt}, v{vL+mt}, v{tA+mt}" for mt in range(5)))
        e("\n".join(f"ds_write_b32 v{vStatW}, v{vL+mt} offset:{2048+mt*256}" for mt in range(5)))
        e([wait_ds()]); e("s_barrier")
        e(self.stamp())
        e(self.p_reads(0))
        tS = vACC + 80
        rs = L("\n".join(f"ds_read_b128 {v(tS+4*mt, 4)}, v{vStatR} offset:{2048+mt*256}" for mt in range(5)))
        rs2 = []
        for mt in range(5):
            rs2 += L(f"""v_add_f32 v{tS+4*mt}, v{tS+4*mt}, v{tS+4*mt+1}
            v_add_f32 v{tS+4*mt+2}, v{tS+4*mt+2}, v{tS+4*mt+3}
            v_add_f32 v{tS+4*mt}, v{tS+4*mt}, v{tS+4*mt+2}
            v_rcp_f32 v{vT+2*mt}, v{tS+4*mt}""")
        rem = 46 - nxt[0]
        pv_p = cfg.get("pv_pumps")
        if pv_p is None:
            pv_p = [((k + 1) * rem) // 15 - (k * rem) // 15 for k in range(15)] + [0]
        for k in range(16):
            c = 30 + k
            while c not in self.buf:
                cc = take(1)[0]
                e(self.pumpA(cc)); e(self.pumpB(cc))
            main = self.gemm_step(c, vACT + 20 * (k & 1), k == 0)
            if k == 9:
                e("s_barrier")
            if k == 2:
                main = merge(main, rs, 0.3, 0.6)
            if k == 3:
                main = merge(main, rs2, 0.0, 1.0)
            pre = self.p_reads(k + 1) if k < 15 else None
            e(self.with_pumps(main, take(pv_p[k]), pre))
            self.release(c)
        assert nxt[0] == 46
        e(self.stamp())
        for j in range(2):
            for mt in range(5):
                pk = vACT + 4 * ((j * 5 + mt) % 4)
                for hh in range(2):
                    d = vACC + ((2 * j + hh) * 5 + mt) * 4
                    e(f"""v_pk_mul_f32 {v(d, 2)}, {v(d, 2)}, {v(vT+2*mt, 2)} op_sel_hi:[1,0]
                    v_pk_mul_f32 {v(d+2, 2)}, {v(d+2, 2)}, {v(vT+2*mt, 2)} op_sel_hi:[1,0]
                    v_cvt_pk_bf16_f32 v{pk+2*hh}, v{d}, v{d+1}
                    v_cvt_pk_bf16_f32 v{pk+2*hh+1}, v{d+2}, v{d+3}""")
                e(f"ds_write_b128 v{vOw}, {v(pk, 4)} offset:{(j*5+mt)*1024}")
        e([wait_vm("c47"), wait_ds()]); e("s_barrier")
        self.free = [x for x in self.free if x >= 10]
        assert len(self.free) == 6

        def wo_reads(j):
            kind, base = self.wo_place(j)
            b0 = self.alloc(("u", j, 0)); b1 = self.alloc(("u", j, 1))
            out = []
            for ko in range(8):
                dst = (b0 if ko < 4 else b1) + 4 * (ko & 3)
                for hf in range(2):
                    if kind == "R":
                        r, off = vrToR, (ko >> 1) * 16384 + (base + (ko & 1)) * 4096
                    else:
                        r, off = (vrToA if kind == "A" else vrToB), ko * 4096
                    out += L(f"ds_read_b64_tr_b16 {a(dst+2*hf, 2)}, v{r} offset:{off + hf*2048}", f"ru{j}")
            return out

        def wo_loads(j):
            return self.load(46 + 2 * j) + self.load(47 + 2 * j)

        orr = [I(f"ds_read_b128 {a((ko*5+mt)*4, 4)}, v{vL0} offset:{(ko*5+mt)*1024}", "ro") for ko in range(8) for mt in range(5)]
        w0 = wo_reads(0)
        first = []
        for ko in range(8):
            first += w0[2 * ko:2 * ko + 2] + orr[5 * ko:5 * ko + 5]
        e(first[:14])
        e(self.stamp())

        def epi(j):
            acc = vACC + 20 * j
            pk = vACT + 12 * (j & 1)
            out = []
            for mt in range(5):
                out += L(f"""v_cvt_pk_bf16_f32 v{pk+2*mt}, v{acc+4*mt}, v{acc+4*mt+1}
                v_cvt_pk_bf16_f32 v{pk+2*mt+1}, v{acc+4*mt+2}, v{acc+4*mt+3}""")
                if mt == 1:
                    out += L(f"buffer_store_dwordx4 {v(pk, 4)}, v{vStA0}, {SRD_P}, s{sSTA+j} offen {self.stpol}", "st")
                if mt == 3:
                    out += L(f"buffer_store_dwordx4 {v(pk+4, 4)}, v{vStA1}, {SRD_P}, s{sSTA+j} offen {self.stpol}", "st")
                if mt == 4:
                    out += L(f"buffer_store_dwordx2 {v(pk+8, 2)}, v{vStB}, {SRD_P}, s{sSTB+j} offen {self.stpol}", "st")
            return out

        loads_after = {0: [3, 4], 1: [5], 2: [6]}
        st_at = cfg.get("st_at", {1: [0], 2: [1], 3: [2], 4: [3], 5: [4], 6: [5]})
        for j in range(7):
            b = [self.buf[("u", j, 0)] * 16, self.buf[("u", j, 1)] * 16]
            main = []
            acc = vACC + 20 * j
            for ko in range(8):
                for mt in range(5):
                    d = v(acc + 4 * mt, 4)
                    main.append(mfma(d, a(b[ko >> 2] + 4 * (ko & 3), 4), a((ko * 5 + mt) * 4, 4), "0" if ko == 0 else d))
            if j == 0:
                main = merge(main, first[14:], 0.0, 0.6)
                main = merge(main, wo_loads(2), 0.0, 0.5)
                lo = 0.7
            else:
                lo = 0.1
            if j < 6:
                r = wo_reads(j + 1)
                sync = [wait_vm(f"c{47+2*(j+1)}"), wait_ds(), I("s_barrier")]
                main = merge(main, [sync + [r[0]]] + r[1:], lo, min(1.0, lo + 0.5))
                lds = []
                for u in loads_after.get(j, []):
                    lds += wo_loads(u)
                if lds:
                    main = merge(main, lds, lo + 0.02, 1.0)
            eps = []
            for jj in st_at.get(j, []):
                eps += epi(jj)
            if eps:
                main = merge(main, eps, 0.3, 0.95)
            e(main)
            self.release(("u", j, 0)); self.release(("u", j, 1))
        done = [jj for l in st_at.values() for jj in l]
        for jj in range(7):
            if jj not in done:
                e(epi(jj))
        e(self.stamp())
        if cfg.get("stamps"):
            e([wait_vm(None)])
            e(self.stamp())
            e(f"""
            s_cmp_lg_u32 s{sW}, {cfg.get('stampwave', 0)}
            s_cbranch_scc1 L_k1_end
            s_mul_i32 s{sT0}, s2, {NSTAMP*8}
            s_add_u32 s{sT0}, s{sT0}, {STAMP_OFF}
            s_add_u32 s24, s14, s{sT0}
            s_addc_u32 s25, s15, 0
            s_mov_b32 s26, {16*8}
            s_mov_b32 s27, 0x20000
            v_lshlrev_b32 v1, 3, v0
            buffer_store_dwordx2 v[{vSt0}:{vSt1}], v1, s[24:27], 0 offen
            """)
        if cfg.get("amp"):
            i0, i1 = cfg["amp"]
            e(f"""
            v_readlane_b32 s48, v{vSt0}, {i0}
            v_readlane_b32 s49, v{vSt0}, {i1}
            s_nop 3
            s_sub_u32 s49, s49, s48
            s_mul_i32 s49, s49, 50
            s_memrealtime s[50:51]
            s_waitcnt lgkmcnt(0)
            L_spin:
            s_memrealtime s[52:53]
            s_waitcnt lgkmcnt(0)
            s_sub_u32 s54, s52, s50
            s_cmp_lt_u32 s54, s49
            s_cbranch_scc1 L_spin
            """)
        e("L_k1_end:\ns_endpgm")

    def text(self):
        self.prologue()
        self.body()
        st = {}
        t = finalize(self.p, st)
        print("K1:", st, "stamps", self.nstamp, file=sys.stderr)
        return t


def k2_text(cfg):
    p = []
    e = lambda x: p.append(L(x) if isinstance(x, str) else x)
    stamps = cfg.get("stamps")
    e(f"""
    s_cmp_ge_u32 s2, 256
    s_cbranch_scc1 L_k2_end
    s_load_dwordx2 s[4:5], s[0:1], 40
    s_load_dwordx2 s[6:7], s[0:1], 56
    """)
    if stamps:
        e("s_memrealtime s[40:41]")
    e(f"""
    s_lshr_b32 s8, s2, 4
    s_and_b32 s9, s2, 15
    v_lshlrev_b32 v1, 4, v0
    s_mul_i32 s10, s8, {16*64512}
    s_lshl_b32 s11, s9, 12
    v_add_u32 v1, s11, v1
    s_waitcnt lgkmcnt(0)
    s_add_u32 s12, s6, s10
    s_addc_u32 s13, s7, 0
    s_mov_b32 s14, {16*64512}
    s_mov_b32 s15, 0x20000
    """)
    for h in range(16):
        e(f"s_mov_b32 s11, {h*64512}")
        e(f"buffer_load_dwordx4 {v(8+4*h, 4)}, v1, s[12:15], s11 offen {cfg.get('k2pol', '')}")
    e(f"""
    s_mul_i32 s10, s8, 64512
    s_add_u32 s16, s4, s10
    s_addc_u32 s17, s5, 0
    s_mov_b32 s18, 64512
    s_mov_b32 s19, 0x20000
    s_cmp_ge_u32 s9, 14
    s_cbranch_scc1 L_k2_typeB
    s_lshr_b32 s10, s9, 1
    s_and_b32 s11, s9, 1
    s_lshl_b32 s10, s10, 7
    s_mul_i32 s11, s11, {32*896}
    s_add_u32 s10, s10, s11
    v_and_b32 v2, 15, v0
    v_mul_u32_u24 v2, 896, v2
    v_lshrrev_b32 v3, 4, v0
    v_lshl_add_u32 v2, v3, 3, v2
    v_add_u32 v2, s10, v2
    v_add_u32 v3, {16*896}, v2
    s_branch L_k2_sum
    L_k2_typeB:
    s_sub_u32 s10, s9, 14
    s_lshl_b32 s10, s10, 9
    s_add_u32 s10, s10, {64*896}
    v_and_b32 v2, 3, v0
    v_mul_u32_u24 v2, {2*896}, v2
    v_lshrrev_b32 v3, 2, v0
    v_lshl_add_u32 v2, v3, 3, v2
    v_add_u32 v2, s10, v2
    s_cmp_eq_u32 s9, 15
    s_cselect_b32 s11, 192, -1
    v_cmp_le_u32 vcc, s11, v0
    v_mov_b32 v4, 0x40000000
    v_cndmask_b32 v2, v2, v4, vcc
    v_add_u32 v3, 896, v2
    L_k2_sum:
    s_mov_b32 s20, 0xffff0000
    """)
    acc = 72
    for h in range(16):
        for d in range(4):
            r = 8 + 4 * h + d
            if h == 0:
                e(f"""v_lshlrev_b32 v{acc+2*d}, 16, v{r}
                v_and_b32 v{acc+2*d+1}, s20, v{r}""")
            else:
                e(f"""v_lshlrev_b32 v4, 16, v{r}
                v_and_b32 v5, s20, v{r}
                v_pk_add_f32 {v(acc+2*d, 2)}, {v(acc+2*d, 2)}, v[4:5]""")
    if stamps:
        e("s_memrealtime s[42:43]")
    for d in range(4):
        e(f"v_cvt_pk_bf16_f32 v{8+d}, v{acc+2*d}, v{acc+2*d+1}")
    e("""
    buffer_store_dwordx2 v[8:9], v2, s[16:19], 0 offen
    buffer_store_dwordx2 v[10:11], v3, s[16:19], 0 offen
    """)
    if stamps:
        e(f"""
        s_waitcnt vmcnt(0)
        s_memrealtime s[44:45]
        s_waitcnt lgkmcnt(0)
        s_mul_i32 s10, s2, {NSTAMP*8}
        s_add_u32 s10, s10, {STAMP_OFF + 16*8}
        s_add_u32 s24, s6, s10
        s_addc_u32 s25, s7, 0
        s_mov_b32 s26, 24
        s_mov_b32 s27, 0x20000
        v_writelane_b32 v6, s40, 0
        v_writelane_b32 v7, s41, 0
        v_writelane_b32 v6, s42, 1
        v_writelane_b32 v7, s43, 1
        v_writelane_b32 v6, s44, 2
        v_writelane_b32 v7, s45, 2
        v_lshlrev_b32 v1, 3, v0
        buffer_store_dwordx2 v[6:7], v1, s[24:27], 0 offen
        """)
    if cfg.get("amp2"):
        i0, sreg = cfg["amp2"]
        e(f"""
        s_mul_i32 s10, s2, {NSTAMP*8}
        s_add_u32 s10, s10, {STAMP_OFF + i0*8}
        s_add_u32 s28, s6, s10
        s_addc_u32 s29, s7, 0
        s_load_dword s30, s[28:29], 0
        s_waitcnt lgkmcnt(0)
        s_sub_u32 s31, s{sreg}, s30
        s_min_u32 s31, s31, 10000
        s_mul_i32 s31, s31, 50
        s_memrealtime s[32:33]
        s_waitcnt lgkmcnt(0)
        L_spin2:
        s_memrealtime s[34:35]
        s_waitcnt lgkmcnt(0)
        s_sub_u32 s36, s34, s32
        s_cmp_lt_u32 s36, s31
        s_cbranch_scc1 L_spin2
        """)
    e("L_k2_end:\ns_endpgm")
    return finalize(p)


def gen(cfg):
    k1 = K1(cfg).text()
    k2 = k2_text(cfg)
    ks = [("mha_fused_kernel", k1, 512, 102, 256), ("mha_reduce_kernel", k2, 80, 48, 80)]
    ls = [("mha_fused_kernel", 256, 256, LDS_BYTES), ("mha_reduce_kernel", 256, 256, 0)]
    if cfg.get("empties"):
        ks.append(("empty_kernel", "    s_endpgm\n", 8, 16, 8))
        ls += [("empty_kernel", 256, 256, 0)] * cfg["empties"]
    return build_file(ks, ls)


if __name__ == "__main__":
    cfg = eval(sys.argv[2]) if len(sys.argv) > 2 else {}
    open(sys.argv[1], "w").write(gen(cfg))
```

```python
import re

REG_RE = re.compile(r"\b([vas])\[(\d+):(\d+)\]|\b([vas])(\d+)\b|\b(vcc|exec|m0)(?:_lo|_hi)?\b")
TRANS = ("v_exp_f32", "v_log_f32", "v_rcp_f32", "v_rsq_f32", "v_sqrt_f32", "v_sin_f32", "v_cos_f32")


def regs_of(s):
    out = []
    for m in REG_RE.finditer(s):
        if m.group(1):
            out += [m.group(1) + str(i) for i in range(int(m.group(2)), int(m.group(3)) + 1)]
        elif m.group(4):
            out.append(m.group(4) + m.group(5))
        else:
            out.append(m.group(6))
    return out


class I:
    __slots__ = ("text", "op", "kind", "rd", "wr", "tag", "srcc", "pseudo")

    def __init__(self, text, tag=None, pseudo=None):
        self.text = text.strip()
        self.tag = tag
        self.pseudo = pseudo
        self.rd = set(); self.wr = set(); self.srcc = set()
        if pseudo:
            self.op = pseudo; self.kind = "pseudo"
            return
        body = self.text.split(";")[0].strip()
        if body.endswith(":") or not body:
            self.op = "label"; self.kind = "label"
            return
        parts = body.split(None, 1)
        op = parts[0]; self.op = op
        ops = [o.strip() for o in parts[1].split(",")] if len(parts) > 1 else []
        R = lambda lst: set(r for o in lst for r in regs_of(o))
        if op.startswith("v_mfma"):
            self.kind = "mfma"; self.wr = R(ops[:1]); self.rd = R(ops[1:]); self.srcc = R(ops[3:4])
        elif op.startswith("ds_read") or op.startswith("ds_bpermute"):
            self.kind = "ds"; self.wr = R(ops[:1]); self.rd = R(ops[1:])
        elif op.startswith("ds_"):
            self.kind = "ds"; self.rd = R(ops)
        elif op.startswith("buffer_load") or op.startswith("global_load"):
            self.kind = "vmem"
            if re.search(r"\blds\b", body):
                self.rd = R(ops) | {"m0"}
            else:
                self.wr = R(ops[:1]); self.rd = R(ops[1:])
        elif op.startswith("buffer_atomic"):
            self.kind = "vmem"; self.rd = R(ops)
            if re.search(r"\bsc0\b", body):
                self.wr = R(ops[:1])
        elif op.startswith("buffer_") or op.startswith("global_"):
            self.kind = "vmem"; self.rd = R(ops)
        elif op.startswith("v_permlane"):
            self.kind = "valu"; self.wr = R(ops); self.rd = R(ops)
        elif op.startswith("v_"):
            self.kind = "valu"; self.wr = R(ops[:1]); self.rd = R(ops[1:])
            if op.startswith("v_fmac") or op.startswith("v_writelane"):
                self.rd |= self.wr
            if op.startswith("v_cndmask") and len(ops) == 3:
                self.rd.add("vcc")
        elif op.startswith("s_load") or op.startswith("s_mem"):
            self.kind = "smem"; self.wr = R(ops[:1]); self.rd = R(ops[1:])
        elif op in ("s_waitcnt", "s_barrier", "s_nop", "s_endpgm", "s_sleep", "s_setprio") or op.startswith("s_cbranch") or op == "s_branch":
            self.kind = "ctl"
        elif op.startswith("s_cmp") or op.startswith("s_bitcmp"):
            self.kind = "salu"; self.rd = R(ops)
        elif op.startswith("s_"):
            self.kind = "salu"; self.wr = R(ops[:1]); self.rd = R(ops[1:])
            if "saveexec" in op:
                self.wr.add("exec")
        else:
            raise ValueError("unknown op: " + text)


def L(text, tag=None):
    return [I(t, tag) for t in text.split("\n") if t.split(";")[0].strip()]


def wait_vm(tag):
    return I("", tag, "wait_vm")


def wait_ds(tag=None):
    return I("", tag, "wait_ds")


def flat(x):
    out = []
    for e in x:
        if isinstance(e, list):
            out += flat(e)
        else:
            out.append(e)
    return out


def merge(main, side, lo=0.0, hi=1.0):
    n = len(main)
    if n == 0:
        return [list(side)]
    out = [[m] for m in main]
    for j, s in enumerate(side):
        pos = min(n - 1, int(lo * n + (hi - lo) * n * j / len(side)))
        out[pos].append(s)
    return out


def finalize(prog, stats=None, ds_old=140):
    out = []
    dsq = []
    vmq = []
    seen_vm_tags = set(); seen_ds_tags = set()
    closed = set()
    t = 0
    last_mfma_wr = {}
    last_mfma_c = {}
    last_valu_wr = {}
    last_trans_wr = {}
    last_salu_m0 = -100
    last_store_rd = {}
    last_valu_exec = -100
    nnop = 0
    clk = [0]
    issue_clk = {}
    nwait = [0]

    def emit(text):
        nonlocal t
        out.append("    " + text)
        t += 1

    def do_wait(vm=None, ds=None):
        s = []
        if vm is not None and len(vmq) > vm:
            n = min(vm, 63)
            s.append(f"vmcnt({n})"); del vmq[:len(vmq) - n]
        if ds is not None and len(dsq) > ds:
            while ds > 0 and clk[0] - issue_clk[id(dsq[len(dsq) - ds])] >= ds_old:
                ds -= 1
            n = min(ds, 15)
            s.append(f"lgkmcnt({n})"); del dsq[:len(dsq) - n]
        if s:
            emit("s_waitcnt " + " ".join(s)); nwait[0] += 1

    def need_after(q, pred):
        last = -1
        for i, o in enumerate(q):
            if pred(o):
                last = i
        return None if last < 0 else len(q) - 1 - last

    for ins in flat(prog):
        if ins.kind == "label":
            out.append(ins.text); continue
        if ins.kind == "pseudo":
            if ins.op == "wait_vm":
                if ins.tag is None:
                    do_wait(vm=0)
                else:
                    assert ins.tag in seen_vm_tags, f"wait_vm on unissued tag {ins.tag}"
                    closed.add(ins.tag)
                    do_wait(vm=need_after(vmq, lambda o: o.tag == ins.tag))
            elif ins.op == "wait_ds":
                if ins.tag is None:
                    do_wait(ds=0)
                else:
                    assert ins.tag in seen_ds_tags, f"wait_ds on unissued tag {ins.tag}"
                    closed.add(ins.tag)
                    do_wait(ds=need_after(dsq, lambda o: o.tag == ins.tag))
            continue
        assert ins.tag is None or ins.tag not in closed, f"op with tag {ins.tag} issued after its wait"
        touched = ins.rd | ins.wr
        do_wait(vm=need_after(vmq, lambda o: o.wr & touched), ds=need_after(dsq, lambda o: o.wr & touched))
        need = t
        def req(t0, ws):
            nonlocal need
            need = max(need, t0 + 1 + ws)
        if ins.kind == "mfma":
            D = frozenset(ins.wr)
            for r in ins.rd:
                if r in last_valu_wr: req(last_valu_wr[r], 2)
                if r in last_mfma_wr:
                    t0, D0 = last_mfma_wr[r]
                    if r in ins.srcc and frozenset(ins.srcc) == D0:
                        pass
                    elif r in ins.srcc:
                        req(t0, 6)
                    else:
                        req(t0, 8)
            for r in ins.wr:
                if r in last_mfma_wr and r not in ins.srcc:
                    t0, D0 = last_mfma_wr[r]
                    req(t0, 6)
            req(last_valu_exec, 4)
        else:
            if ins.kind in ("valu", "ds", "vmem"):
                for r in touched:
                    if r in last_mfma_wr: req(last_mfma_wr[r][0], 8)
            if ins.kind == "valu":
                for r in ins.wr:
                    if r in last_mfma_c: req(last_mfma_c[r], 3)
                    if r in last_store_rd: req(last_store_rd[r], 2)
                for r in ins.rd:
                    if r in last_trans_wr and ins.op not in TRANS: req(last_trans_wr[r], 1)
                    if r in last_valu_wr:
                        if ins.op.startswith("v_permlane") or "dpp" in ins.text or "row_" in ins.text: req(last_valu_wr[r], 2)
                        if ins.op.startswith("v_readfirstlane") or ins.op.startswith("v_readlane"): req(last_valu_wr[r], 1)
                        if r[0] == "s" or r == "vcc": req(last_valu_wr[r], 2)
            if ins.kind in ("ds", "vmem"):
                for r in ins.rd:
                    if r in last_trans_wr: req(last_trans_wr[r], 1)
                for r in ins.wr:
                    if r in last_store_rd: req(last_store_rd[r], 1)
            if ins.kind == "vmem":
                for r in ins.rd:
                    if r[0] == "s" and r in last_valu_wr: req(last_valu_wr[r], 5)
                if "m0" in ins.rd: req(last_salu_m0, 1)
            if ins.kind in ("salu", "smem"):
                for r in ins.rd:
                    if r in last_valu_wr: req(last_valu_wr[r], 2)
        while t < need:
            k = min(need - t, 16)
            out.append(f"    s_nop {k-1}"); t += k; nnop += k
        tt = t
        issue_clk[id(ins)] = clk[0]
        clk[0] += 12 if ins.kind == "mfma" else (8 if ins.op in TRANS else 3)
        if ins.op == "s_nop":
            out.append("    " + ins.text); t += int(ins.text.split()[1]) + 1
        else:
            emit(ins.text)
        if ins.op == "s_waitcnt":
            m = re.search(r"vmcnt\((\d+)\)", ins.text)
            if m and len(vmq) > int(m.group(1)): del vmq[:len(vmq) - int(m.group(1))]
            m = re.search(r"lgkmcnt\((\d+)\)", ins.text)
            if m and len(dsq) > int(m.group(1)): del dsq[:len(dsq) - int(m.group(1))]
        for r in ins.wr:
            last_mfma_wr.pop(r, None); last_valu_wr.pop(r, None); last_trans_wr.pop(r, None)
        if ins.kind == "mfma":
            for r in ins.wr: last_mfma_wr[r] = (tt, frozenset(ins.wr))
            for r in ins.srcc: last_mfma_c[r] = tt
        elif ins.kind == "valu":
            for r in ins.wr:
                last_valu_wr[r] = tt
                if ins.op in TRANS: last_trans_wr[r] = tt
            if "exec" in ins.wr: last_valu_exec = tt
        elif ins.kind == "salu":
            if "m0" in ins.wr: last_salu_m0 = tt
        elif ins.kind == "ds":
            dsq.append(ins); seen_ds_tags.add(ins.tag)
        elif ins.kind == "vmem":
            vmq.append(ins); seen_vm_tags.add(ins.tag)
            if "store" in ins.op and ("x4" in ins.op or "x3" in ins.op):
                for r in ins.rd: last_store_rd[r] = tt
    if stats is not None:
        stats["nop_states"] = nnop
        stats["waits"] = nwait[0]
        stats["ninstr"] = len(out)
    return "\n".join(out) + "\n"


def cost(x):
    if isinstance(x, list):
        return sum(cost(y) for y in x)
    if not isinstance(x, I):
        return getattr(x, "cost", 4)
    if x.kind == "pseudo":
        return 3
    if x.op in TRANS:
        return 8
    if x.op == "ds_write_b128" or x.op.startswith("buffer_store_dwordx4"):
        return 20
    if x.op == "ds_write_b64" or x.op.startswith("buffer_store"):
        return 12
    if x.kind == "mfma":
        return 8
    return 4


def is_mem(x):
    if isinstance(x, list):
        return any(is_mem(y) for y in x)
    if not isinstance(x, I):
        return True
    return x.kind in ("ds", "vmem", "pseudo") or x.op == "s_barrier"


class Slot:
    def __init__(self, main):
        self.main = main; self.mem = []; self.valu = []

    def load(self):
        return cost(self.mem) + cost(self.valu)

    def out(self):
        return [self.main, self.mem, self.valu]


def slots(items):
    return [Slot(x) for x in items]


def put_mem(G, items, s0, s1, cap=8):
    n = len(items); pos = []
    last = s0
    for i, x in enumerate(items):
        p = max(last, s0 + (i * (s1 - s0)) // n)
        lim = min(len(G) - 1, max(p, s0 + ((i + 1) * (s1 - s0)) // n + 1, s1 - 1 if n == 1 else 0))
        q = p
        while q < lim and G[q].load() + cost(x) > cap:
            q += 1
        if q >= len(G) or G[min(q, len(G) - 1)].load() + cost(x) > cap:
            q = min(range(min(p, len(G) - 1), lim + 1), key=lambda z: (G[z].load(), z))
        G[q].mem.append(x); pos.append(q); last = q
    return pos


def put_valu(G, items, s0, s1):
    tot = sum(cost(x) for x in items)
    loads = [G[s].load() for s in range(s0, s1)]
    lo, hi = 0, 400
    while hi - lo > 0.01:
        mid = (lo + hi) / 2
        if sum(max(0, mid - l) for l in loads) >= tot: hi = mid
        else: lo = mid
    lvl = hi
    s = s0
    credit = max(0, lvl - loads[0])
    last = s0
    for x in items:
        c = cost(x)
        while s < s1 - 1 and (credit < c * 0.5 or (lvl <= 8 and G[s].load() + c > 8 and c <= 8 and not is_mem(x))):
            s += 1
            credit += max(0, lvl - loads[s - s0])
        if is_mem(x) or (isinstance(x, I) and x.kind == "mfma"):
            if G[s].valu and s + 1 < len(G):
                s += 1
                if s < s1: credit += max(0, lvl - loads[s - s0])
            G[s].mem.append(x)
        else:
            G[s].valu.append(x)
        credit -= c
        last = s
        if s >= s1:
            s1 = s + 1; loads.append(0)
    return last
```

```python
import sys
from asmlib import *
from ir import *

STAMP_OFF = 200 << 20
NSTAMP = 32
STAT = 147456
LDS_BYTES = 163840
KBIAS = 2048
PART = 129024

FLAG_OFF = 17 << 20
SPIN_MAX = 400000

sW = 3
sB, sH, sQH, sG = 16, 17, 18, 19
SRD_X, SRD_K, SRD_V, SRD_WQ, SRD_WO, SRD_P = "s[24:27]", "s[28:31]", "s[32:35]", "s[36:39]", "s[40:43]", "s[44:47]"
sSEG = 48
sPAR = 55
sWQO = 56
sU = 70
SRD_F, SRD_D = "s[80:83]", "s[84:87]"
sOUT = 88
sNEED, sSLO, sOUTO = 77, 78, 79
sT0, sT1, sT2, sU0 = 20, 21, 22, 23
sSOFF = 91
sX8 = 92
sC = 96
sX8M = 97
sRING = 98
sXM = 99

vdX0, vdX1, vdX8 = 2, 3, 4
vdWq, vdK, vdV, vdWo = 5, 9, 13, 17
vrT = 21
vrToR, vrToR2, vrToB = 25, 26, 27
vrX, vrK = 28, 30
vL0, vL1 = 32, 33
vQw, vPw, vOw = 34, 35, 36
vStatW, vStatR = 37, 38
vStA0, vStA1, vStB = 39, 40, 41
vSt0, vSt1 = 42, 43
vMaxA, vPw2 = 44, 45
vFw = 1
vCo, vCd = 55, 54
vFr, vRd, vO0, vO1, vCn, vFl = 2, 3, 28, 29, 30, 31
vT = 46
vACT = 56
vACC = 96
MF = "v_mfma_f32_16x16x32_bf16"


def v(r, n=1):
    return f"v{r}" if n == 1 else f"v[{r}:{r+n-1}]"


def a(r, n=1):
    return f"a{r}" if n == 1 else f"a[{r}:{r+n-1}]"


class T:
    def __init__(self, f, key, tag=None, rd=False, partial=False):
        self.f = f; self.key = key; self.tag = tag; self.rd = rd; self.partial = partial
        self.alloc = 0; self.free = False; self.cost = 4


class Ev:
    def __init__(self, kind, bufs):
        self.kind = kind; self.bufs = bufs; self.cost = 0


DEF5 = dict(wq0=30, wqd=20, pumps=[("qp", 1, 0.90, 0.95), ("qk", 16, 0.0, 1.0), ("sm0", 0, 0, 0.8), ("pv0", 4, 0, 1), ("pv1", 4, 0, 1), ("pv2", 4, 0, 1), ("pv3", 3, 0, 0.72)])
DEF4 = dict(wq0=24, wqd=8, pumps=[("qp", 5, 0.58, 0.95), ("qk", 12, 0.02, 0.95), ("sm0", 2, 0, 0.8), ("pv0", 4, 0, 1), ("pv1", 4, 0, 1), ("pv2", 3, 0, 1), ("pv3", 2, 0, 0.5)])


class K1:
    def __init__(self, cfg, NT):
        c = dict(DEF5 if NT == 5 else DEF4)
        c.update(cfg); c.update(cfg.get(f"n{NT}", {}))
        self.cfg = c
        self.NT = NT
        self.S = c.get("S", 4 if NT == 5 else 5)
        self.AREG = NT * 16384
        self.RING = self.AREG
        self.WS = self.S * 4096
        assert self.RING + 4 * self.WS <= STAT
        self.XS = NT * 2048
        self.XB = self.AREG - 7 * self.XS
        self.NQB = 2 * NT
        self.p = []
        self.nstamp = 0
        self.kperm = c.get("kperm", list(range(8)))
        self.vperm = c.get("vperm", list(range(16)))
        assert all(self.vperm[k] >> 2 == k >> 2 for k in range(16))
        self.FS = c.get("FS", 128)
        self.kvpol = c.get("kvpol", "")
        self.stpol = c.get("stpol", "")

    def e(self, x):
        self.p.append(L(x) if isinstance(x, str) else x)

    def stamp(self):
        return [Ev("stamp", None)] if self.cfg.get("stamps") else []

    def prologue(self):
        e = self.e
        NT, XB, XS, RING, WS = self.NT, self.XB, self.XS, self.RING, self.WS
        t0, t1, t2, t3, t4 = vT, vT + 1, vT + 2, vT + 3, vT + 4
        e(f"""
        s_mul_i32 s{sT0}, s{sG}, 7
        s_lshr_b32 s{sT1}, s{sT0}, 3
        s_mul_i32 s{sT2}, s{sT2}, 7
        s_add_u32 s{sT1}, s{sT1}, s{sT2}
        s_cmp_ge_u32 s{sT1}, 14
        s_cselect_b32 s{sT2}, 14, 0
        s_sub_u32 s{sT1}, s{sT1}, s{sT2}
        s_and_b32 s{sPAR}, s{sT1}, 1
        s_lshr_b32 s{sT1}, s{sT1}, 1
        s_lshr_b32 s{sU0}, s{sT0}, 4
        s_lshl_b32 s{sSEG}, s{sT1}, 7
        """)
        for j in range(1, 7):
            e(f"""
            s_add_u32 s{sSEG+j}, s{sSEG+j-1}, 128
            s_cmp_eq_u32 s{sSEG+j}, 896
            s_cselect_b32 s{sSEG+j}, 0, s{sSEG+j}
            """)
        e(f"""
        v_lshrrev_b32 v{t0}, 3, v0
        v_and_b32 v{t1}, 7, v0
        v_and_b32 v{t2}, 6, v{t0}
        v_xor_b32 v{t1}, v{t1}, v{t2}
        v_lshlrev_b32 v{t1}, 4, v{t1}
        v_mul_u32_u24 v{t2}, 896, v{t0}
        v_add_u32 v{t2}, v{t2}, v{t1}
        s_mul_i32 s{sT0}, s{sW}, {8*896}
        v_add_u32 v{vdX0}, s{sT0}, v{t2}
        v_add_u32 v{vdX1}, {32*896}, v{vdX0}
        s_lshl_b32 s{sXM}, s{sW}, 10
        s_add_u32 s{sXM}, s{sXM}, {XB}
        s_mul_i32 s{sRING}, s{sW}, {WS}
        s_add_u32 s{sRING}, s{sRING}, {RING}
        """)
        if NT == 5:
            e(f"""
            s_and_b32 s{sT0}, s{sW}, 1
            s_lshl_b32 s{sX8M}, s{sT0}, 10
            s_mul_i32 s{sT0}, s{sT0}, {8*896}
            s_add_u32 s{sT0}, s{sT0}, {64*896}
            v_add_u32 v{vdX8}, s{sT0}, v{t2}
            s_cmp_ge_u32 s{sW}, 2
            s_cselect_b32 s{sX8}, s{sSEG+1}, s{sSEG}
            s_cselect_b32 s{sX8+1}, s{sSEG+3}, s{sSEG+2}
            s_cselect_b32 s{sX8+2}, s{sSEG+5}, s{sSEG+4}
            s_cselect_b32 s{sX8+3}, {XS}, 0
            s_add_u32 s{sX8+3}, s{sX8+3}, s{sX8M}
            """)
        e(f"""
        v_and_b32 v{t3}, 3, v{t0}
        v_lshrrev_b32 v{t4}, 2, v{t0}
        v_lshl_add_u32 v{t3}, v{t4}, 3, v{t3}
        v_lshl_add_u32 v{t3}, v{t3}, 13, v{t1}
        s_lshl_b32 s{sT0}, s{sW}, 7
        v_add_u32 v{vdWq}, s{sT0}, v{t3}
        v_add_u32 v{vdWq+1}, {16*8192-1024}, v{vdWq}
        v_add_u32 v{vdWq+2}, {4*8192-2048}, v{vdWq}
        v_add_u32 v{vdWq+3}, {20*8192-3072}, v{vdWq}
        s_lshl_b32 s{sT2}, s{sPAR}, 18
        s_lshl_b32 s{sWQO}, s{sSEG}, 12
        s_add_u32 s{sWQO}, s{sWQO}, s{sT2}
        s_mul_i32 s{sT0}, s{sB}, 129024
        s_add_u32 s{sT0}, s{sT0}, {0 if NT == 5 else 80*896}
        s_lshl_b32 s{sT1}, s{sH}, 9
        s_mov_b32 s26, {NT*16*896}
        s_mov_b32 s27, 0x20000
        s_sub_u32 s38, 3670016, s{sT1}
        s_mov_b32 s39, 0x20000
        s_waitcnt lgkmcnt(0)
        s_add_u32 s24, s4, s{sT0}
        s_addc_u32 s25, s5, 0
        s_add_u32 s36, s10, s{sT1}
        s_addc_u32 s37, s11, 0
        """)
        if self.cfg.get("stamps"):
            self.nstamp = 1
            e(f"v_writelane_b32 v{vSt0}, s100, 0\nv_writelane_b32 v{vSt1}, s101, 0")
        if self.cfg.get("pstamps"): e(self.stamp())
        e(self.x_loads(0))
        e(self.load(0))
        if self.cfg.get("pstamps"): e(self.stamp())
        for ks in range(1, 14):
            if ks % 2 == 0:
                e(f"""s_lshl_b32 s{sWQO+ks}, s{sSEG+ks//2}, 12
                s_add_u32 s{sWQO+ks}, s{sWQO+ks}, s{sT2}""")
            else:
                e(f"s_xor_b32 s{sWQO+ks}, s{sWQO+ks-1}, {1<<18}")
        e(f"""
        s_lshl_b32 s{sT0}, s{sB}, 4
        s_add_u32 s{sT1}, s{sT0}, s{sH}
        s_lshl_b32 s{sT0}, s{sT1}, 18
        s_add_u32 s28, s6, s{sT0}
        s_addc_u32 s29, s7, 0
        s_sub_u32 s28, s28, {KBIAS}
        s_subb_u32 s29, s29, 0
        s_mov_b32 s30, {262144+KBIAS}
        s_mov_b32 s31, 0x20000
        s_add_u32 s32, s8, s{sT0}
        s_addc_u32 s33, s9, 0
        s_mov_b32 s34, 262144
        s_mov_b32 s35, 0x20000
        s_mul_i32 s{sT0}, s{sH}, 229376
        s_add_u32 s40, s12, s{sT0}
        s_addc_u32 s41, s13, 0
        s_mov_b32 s42, 229376
        s_mov_b32 s43, 0x20000
        s_mul_i32 s{sT0}, s{sT1}, {PART}
        s_add_u32 s44, s14, s{sT0}
        s_addc_u32 s45, s15, 0
        s_mov_b32 s46, {PART}
        s_mov_b32 s47, 0x20000
        s_mov_b32 s{sC}, 0x3db8aa3b
        """)
        if self.cfg.get("tlb"):
            e(f"""
            s_mul_i32 s{sT0}, s{sW}, {self.cfg.get('tlbstride', 0)}
            buffer_load_dword v{vACC}, off, {SRD_K}, s{sT0} offset:{KBIAS}
            buffer_load_dword v{vACC+1}, off, {SRD_V}, s{sT0}
            buffer_load_dword v{vACC+2}, off, {SRD_WO}, s{sT0}
            buffer_load_dword v{vACC+3}, off, {SRD_P}, s{sT0}
            """)
        e(f"""
        v_lshl_add_u32 v{t3}, v{t0}, 9, v{t1}
        s_lshl_b32 s{sT0}, s{sW}, 14
        s_add_u32 s{sT0}, s{sT0}, {KBIAS}
        v_add_u32 v{vdK}, s{sT0}, v{t3}
        v_add_u32 v{vdK+1}, {4096-1024}, v{vdK}
        v_subrev_u32 v{vdK+2}, {2048-128}, v{vdK}
        v_add_u32 v{vdK+3}, {4096+128-3072}, v{vdK}
        s_lshl_b32 s{sT0}, s{sW}, 7
        v_add_u32 v{vdV}, s{sT0}, v{t3}
        v_add_u32 v{vdV+1}, {1*3072}, v{vdV}
        v_add_u32 v{vdV+2}, {2*3072}, v{vdV}
        v_add_u32 v{vdV+3}, {3*3072}, v{vdV}
        s_mul_i32 s{sT0}, s{sW}, {64*896}
        v_add_u32 v{vdWo}, s{sT0}, v{t2}
        v_add_u32 v{vdWo+1}, {1*6144}, v{vdWo}
        v_add_u32 v{vdWo+2}, {2*6144}, v{vdWo}
        v_add_u32 v{vdWo+3}, {3*6144}, v{vdWo}
        s_lshl_b32 s{sU}, s{sU0}, 7
        """)
        for j in range(7):
            if j:
                e(f"""
                s_add_u32 s{sU+j}, s{sU+j-1}, 128
                s_cmp_eq_u32 s{sU+j}, 896
                s_cselect_b32 s{sU+j}, 0, s{sU+j}
                """)
        part = 0 if NT == 5 else 1
        FS = self.FS
        e(f"""
        s_mul_i32 s{sT0}, s{sB}, {128*FS}
        s_add_u32 s{sT0}, s{sT0}, {FLAG_OFF}
        s_add_u32 s80, s14, s{sT0}
        s_addc_u32 s81, s15, 0
        s_mov_b32 s82, {128*FS}
        s_mov_b32 s83, 0x20000
        s_mov_b32 s86, 256
        s_mov_b32 s87, 0x20000
        s_lshl_b32 s{sT0}, s{sH}, 2
        s_add_u32 s{sT0}, s{sT0}, s{sW}
        s_add_u32 s{sT0}, s{sT0}, {part*64}
        s_mul_i32 s{sT0}, s{sT0}, {FS}
        v_lshrrev_b32 v{vFw}, 5, v0
        v_lshlrev_b32 v{vFw}, 30, v{vFw}
        v_lshl_add_u32 v{vFw}, v0, 2, v{vFw}
        v_add_u32 v{vFw}, s{sT0}, v{vFw}
        v_mov_b32 v{vACT+2}, 0
        """)
        e(L(f"buffer_store_dword v{vACT+2}, v{vFw}, {SRD_F}, 0 offen sc1", "fz"))
        e(f"""
        v_lshrrev_b32 v{t0}, 2, v0
        v_bfe_u32 v{t1}, v0, 3, 2
        v_and_b32 v{t2}, 3, v0
        v_lshlrev_b32 v{t2}, 3, v{t2}
        v_lshl_add_u32 v{t2}, v{t0}, 7, v{t2}
        v_lshl_add_u32 v{t3}, v{t1}, 5, v{t2}
        v_add_u32 v{vrT}, s{sRING}, v{t3}
        v_xor_b32 v{vrT+1}, 32, v{vrT}
        v_xor_b32 v{vrT+2}, 64, v{vrT}
        v_xor_b32 v{vrT+3}, 96, v{vrT}
        s_lshl_b32 s{sT0}, s{sW}, 5
        v_xor_b32 v{t3}, s{sT0}, v{t3}
        v_add_u32 v{vrToR}, {RING}, v{t3}
        v_add_u32 v{vrToR2}, {RING+2*WS}, v{t3}
        v_add_u32 v{vrToB}, {self.AREG//2}, v{t3}
        """)
        e(f"""
        v_and_b32 v{t0}, 15, v0
        v_lshrrev_b32 v{t1}, 4, v0
        v_and_b32 v{t2}, 6, v0
        v_xor_b32 v{t2}, v{t2}, v{t1}
        v_lshlrev_b32 v{t2}, 4, v{t2}
        v_lshl_add_u32 v{t2}, v{t0}, 7, v{t2}
        v_add_u32 v{vrK}, s{sRING}, v{t2}
        v_xor_b32 v{vrK+1}, 64, v{vrK}
        s_lshl_b32 s{sT0}, s{sPAR}, 6
        v_xor_b32 v{t2}, s{sT0}, v{t2}
        v_add_u32 v{vrX}, {XB}, v{t2}
        v_xor_b32 v{vrX+1}, 64, v{vrX}
        v_lshlrev_b32 v{vL0}, 4, v0
        v_add_u32 v{vL1}, 40960, v{vL0}
        s_mul_i32 s{sT0}, s{sW}, {2*NT*1024}
        v_add_u32 v{vOw}, s{sT0}, v{vL0}
        s_mul_i32 s{sT2}, s{sW}, {NT*1024}
        v_add_u32 v{vPw}, s{sT2}, v{vL0}
        v_add_u32 v{vPw2}, 40960, v{vPw}
        v_lshrrev_b32 v{t2}, 1, v{t1}
        v_lshlrev_b32 v{t2}, 8, v{t2}
        v_lshl_add_u32 v{t2}, v{t0}, 4, v{t2}
        v_and_b32 v{t3}, 1, v{t1}
        v_lshl_add_u32 v{t2}, v{t3}, 3, v{t2}
        v_add_u32 v{vQw}, s{sT0}, v{t2}
        v_lshlrev_b32 v{t2}, 4, v{t0}
        v_add_u32 v{vStatR}, {STAT+2048}, v{t2}
        s_lshl_b32 s{sT0}, s{sW}, 2
        v_add_u32 v{vStatW}, s{sT0}, v{vStatR}
        v_lshlrev_b32 v{t2}, 5, v{t0}
        v_add_u32 v{vMaxA}, {STAT}, v{t2}
        v_lshlrev_b32 v{t2}, 3, v0
        v_add_u32 v{t3}, {STAT}, v{t2}
        v_mov_b32 v{vACT}, 0xff800000
        v_mov_b32 v{vACT+1}, 0xff800000
        ds_write_b64 v{t3}, v[{vACT}:{vACT+1}]
        s_lshl_b32 s{sT0}, s{sW}, 10
        s_add_u32 s{sT0}, s{sT0}, {0 if NT == 5 else 57344}
        v_add_u32 v{vStA0}, s{sT0}, v{vL0}
        v_add_u32 v{vStA1}, 4096, v{vStA0}
        s_lshl_b32 s{sT0}, s{sW}, 9
        s_add_u32 s{sT0}, s{sT0}, {2*57344}
        v_add_u32 v{vStB}, s{sT0}, v{t2}
        """)

    def code_setup(self):
        NT = self.NT
        t0 = vT
        return L(f"""
        s_getpc_b64 s[4:5]
        L_pc{NT}:
        s_sub_u32 s4, s4, L_pc{NT}-L_path{NT}
        s_subb_u32 s5, s5, 0
        s_and_b32 s{sT0}, s{sH}, 1
        s_lshl_b32 s{sT1}, s{sB}, 1
        s_add_u32 s{sT0}, s{sT0}, s{sT1}
        s_lshl_b32 s{sT0}, s{sT0}, 2
        s_add_u32 s{sT0}, s{sT0}, s{sW}
        s_lshl_b32 s90, s{sT0}, 7
        """)

    def code_touch(self, tmp):
        NT = self.NT
        return (L(f"""v_and_b32 v{tmp}, 3, v0
        v_lshlrev_b32 v{tmp}, 13, v{tmp}
        v_add_u32 v{tmp}, s90, v{tmp}
        v_min_u32 v{tmp}, L_pend{NT}-L_path{NT}-4, v{tmp}"""), L(f"global_load_dword v{tmp}, v{tmp}, s[4:5]"))

    def x_loads(self, half):
        out = []
        tag = f"x{half}"
        XS, XB = self.XS, self.XB
        js = range(0, 4) if half == 0 else range(4, 7)
        for j in js:
            out.append([L(f"s_add_u32 m0, s{sXM}, {j*XS}"), L(f"buffer_load_dwordx4 v{vdX0}, {SRD_X}, s{sSEG+j} offen lds", tag)])
            out.append([L(f"s_add_u32 m0, s{sXM}, {j*XS+4096}"), L(f"buffer_load_dwordx4 v{vdX1}, {SRD_X}, s{sSEG+j} offen lds", tag)])
            if self.NT == 5 and j in (1, 3, 5):
                out.append([L(f"s_add_u32 m0, s{sX8+3}, {XB+8192+(j-1)*XS}"), L(f"buffer_load_dwordx4 v{vdX8}, {SRD_X}, s{sX8+j//2} offen lds", tag)])
            if self.NT == 5 and j == 6:
                out.append([L(f"s_add_u32 m0, s{sX8M}, {XB+8192+6*XS}"), L(f"buffer_load_dwordx4 v{vdX8}, {SRD_X}, s{sSEG+6} offen lds", tag)])
        return out

    def wo_place(self, j):
        r0, r1 = 46 % self.S, 48 % self.S
        return [("R", r0), ("R", r1), ("B", 0), ("R", r0), ("R", r1), ("B", 0), ("R", r0)][j]

    def load(self, c):
        tag = f"c{c}"
        pre = []
        if c < 46:
            pre.append(f"s_add_u32 m0, s{sRING}, {(c % self.S)*4096}")
        if c < 14:
            vd, srd, so, pol = vdWq, SRD_WQ, f"s{sWQO+c}", ""
        elif c < 30:
            k = c - 14
            t = self.kperm[k >> 1]
            pre.append(f"s_mov_b32 s{sSOFF}, {(t >> 1)*65536 + (t & 1)*8192 + (k & 1)*256}")
            vd, srd, so, pol = vdK, SRD_K, f"s{sSOFF}", self.kvpol
        elif c < 46:
            k = c - 30
            pre.append(f"s_mov_b32 s{sSOFF}, {self.vperm[k]*16384}")
            vd, srd, so, pol = vdV, SRD_V, f"s{sSOFF}", self.kvpol
        else:
            j, ee = (c - 46) >> 1, (c - 46) & 1
            kind, base = self.wo_place(j)
            if kind == "R":
                pre.append(f"s_add_u32 m0, s{sRING}, {(base+ee)*4096}")
            else:
                pre.append(f"s_lshl_b32 s{sT0}, s{sW}, 13")
                pre.append(f"s_add_u32 m0, s{sT0}, {self.AREG//2 + ee*4096}")
            if ee:
                pre.append(f"s_add_u32 s{sSOFF}, s{sU+j}, {32*896}")
                so = f"s{sSOFF}"
            else:
                so = f"s{sU+j}"
            vd, srd, pol = vdWo, SRD_WO, ""
        groups = []
        for i in range(4):
            off = f" offset:{1024*i}" if i else ""
            groups.append([L("\n".join(pre)) if i == 0 else [],
                           L(f"buffer_load_dwordx4 v{vd+i}, {srd}, {so} offen{off} {pol} lds", tag)])
        return groups

    def read(self, c):
        tag = f"r{c}"
        so = (c % self.S) * 4096
        out = []
        if 14 <= c < 30:
            for j in range(4):
                out.append(T(lambda b, j=j: f"ds_read_b128 {a(b+4*j, 4)}, v{vrK+(j & 1)} offset:{so + (j >> 1)*2048}", c, tag, rd=True))
        else:
            for nt in range(4):
                for hf in range(2):
                    out.append(T(lambda b, nt=nt, hf=hf: f"ds_read_b64_tr_b16 {a(b+4*nt+2*hf, 2)}, v{vrT+nt} offset:{so + hf*2048}", c, tag, rd=True))
        out[0].alloc = len(out)
        return out

    def resolve(self, prog):
        free = list(range(16)); buf = {}; pend = {}
        out = []
        for x in flat(prog):
            if isinstance(x, Ev):
                if x.kind == "stamp":
                    i = self.nstamp; self.nstamp += 1
                    clk = self.cfg.get("clk", "s_memrealtime")
                    out += L(f"""{clk} s[100:101]
                    s_waitcnt lgkmcnt(0)
                    v_writelane_b32 v{vSt0}, s100, {i}
                    v_writelane_b32 v{vSt1}, s101, {i}""")
                elif x.kind == "forget":
                    pass
                elif x.kind == "reserve":
                    for b in x.bufs:
                        assert b in free, f"reserve: buffer {b} busy ({buf})"
                        free.remove(b)
                else:
                    free += x.bufs
                continue
            if not isinstance(x, T):
                out.append(x); continue
            k = x.key
            if x.alloc:
                cand = sorted(free)
                if not (isinstance(k, int) and k < 14):
                    cand = cand[::-1]
                    if isinstance(k, int) and k < 30:
                        cand = [b for b in cand if b >= self.NQB]
                assert cand, f"no free fragment buffer for {k}"
                free.remove(cand[0]); buf[k] = cand[0]; pend[k] = x.alloc
            assert k in buf, f"{k} used before its reads"
            if x.rd:
                pend[k] -= 1
            elif not x.partial:
                assert pend[k] == 0, f"{k} used while {pend[k]} reads are still to be issued"
            out.append(I(x.f(buf[k] * 16), x.tag))
            if x.free:
                free.append(buf.pop(k))
        return out

    def x_reads(self, ks):
        b = vACT + 20 * (ks & 1)
        j = ks >> 1
        if j >= 4:
            j -= 4
        return [I(f"ds_read_b128 {v(b+4*mt, 4)}, v{vrX+(ks & 1)} offset:{j*self.XS + mt*2048}") for mt in range(self.NT)]

    def p_reads(self, kp):
        b = 20 * (kp & 1)
        out = []
        for mt in range(self.NT):
            off = (self.vperm[kp] * self.NT + mt) * 1024
            r = vL0
            if off >= 40960:
                off -= 40960; r = vL1
            out.append(I(f"ds_read_b128 {a(b+4*mt, 4)}, v{r} offset:{off}"))
        return out

    def gemm_step(self, c, acc, act, first, order=None):
        out = []
        NT = self.NT
        for (nt, mt) in (order or [(nt, mt) for nt in range(4) for mt in range(NT)]):
            d = v(acc + (nt * NT + mt) * 4, 4)
            out.append(T(lambda b, d=d, nt=nt, mt=mt: f"{MF} {d}, {a(b+4*nt, 4)}, {act(mt)}, {'0' if first else d}", c))
        out[-1].free = True
        return out

    def body(self):
        e = self.e
        cfg = self.cfg
        NT, S = self.NT, self.S
        ST = 4 * NT
        if cfg.get("pstamps"): e(self.stamp())
        if cfg.get("cpf"):
            e(self.code_setup())
            if "start" in cfg["cpf"]:
                e(list(self.code_touch(255)))
        npre_l = cfg.get("pre_loads", 2)
        for c in range(1, 1 + npre_l):
            e(self.load(c))
        if cfg.get("pstamps"): e(self.stamp())
        e([wait_vm("x0"), wait_ds()]); e("s_barrier")
        e(self.stamp())
        e(self.x_reads(0))
        e([wait_vm("c0")]); e(self.read(0))

        G = []
        seg = {}
        late = []

        def add(name, items):
            s0 = len(G)
            G.extend(slots(items))
            seg[name] = (s0, len(G))
            return s0

        BAR = lambda *w: list(w) + L("s_barrier")

        m = []
        for ks in range(14):
            m += self.gemm_step(ks, vACC, lambda mt, ks=ks: v(vACT + 20 * (ks & 1) + 4 * mt, 4), ks == 0)
        add("qp", m + [[]])
        G[7 * ST - 2].valu.append(L(f"""v_add_u32 v{vrX}, {4*self.XS}, v{vrX}
        v_add_u32 v{vrX+1}, {4*self.XS}, v{vrX+1}"""))
        G[7 * ST - 1].mem.append(BAR(wait_vm("x1"), wait_vm("fz")))
        for ks in range(13):
            ps = put_mem(G, self.x_reads(ks + 1), ST * ks, ST * ks + 2 * NT)
            assert ps[-1] < ST * (ks + 1) - 2
        qe = []
        for nt in range(4):
            for mt in range(NT):
                d = vACC + (nt * NT + mt) * 4
                t = vT + 2 * ((nt * NT + mt) % 4)
                qe.append((L(f"""v_cvt_pk_bf16_f32 v{t}, v{d}, v{d+1}
                v_cvt_pk_bf16_f32 v{t+1}, v{d+2}, v{d+3}"""),
                           L(f"ds_write_b64 v{vQw}, {v(t, 2)} offset:{((nt >> 1)*NT + mt)*1024 + (nt & 1)*512}", "qw")))
        lag = 3
        for i in range(ST - lag):
            G[13 * ST + i + lag].valu.append(qe[i][0]); G[13 * ST + i + lag + 1].mem.append(qe[i][1])
        G[14 * ST].valu.append([q[0] for q in qe[ST - lag:]] + [q[1] for q in qe[ST - lag:]])
        qr = [I(f"ds_read_b128 {a((kq*NT+mt)*4, 4)}, v{vL0} offset:{(kq*NT+mt)*1024}") for kq in range(8) for mt in range(NT)]
        npre = cfg.get("qr_pre", 8)
        add("qe", [[self.stamp(), BAR(wait_ds("qw")), Ev("reserve", list(range(self.NQB))), qr[:npre]]])
        vM = vT

        def maxops(t):
            out = []
            for mt in range(NT):
                s = vACC + (self.kperm[t] * NT + mt) * 4
                if t == 0:
                    out += L(f"""v_max3_f32 v{vM+mt}, v{s}, v{s+1}, v{s+2}
                    v_max_f32 v{vM+mt}, v{vM+mt}, v{s+3}""")
                else:
                    out += L(f"""v_max3_f32 v{vM+mt}, v{vM+mt}, v{s}, v{s+1}
                    v_max3_f32 v{vM+mt}, v{vM+mt}, v{s+2}, v{s+3}""")
            return out

        m = []
        for k in range(16):
            c = 14 + k
            t, hf = self.kperm[k >> 1], k & 1
            order = [(j, mt) for j in range(4) for mt in range(NT)]
            if k == 15:
                order = [(j, mt) for mt in range(NT) for j in range(4)]
            for (j, mt) in order:
                kq = 4 * hf + j
                d = v(vACC + (t * NT + mt) * 4, 4)
                m.append(T(lambda b, d=d, j=j, kq=kq, mt=mt: f"{MF} {d}, {a(b+4*j, 4)}, {a((kq*NT+mt)*4, 4)}, {'0' if kq == 0 else d}", c))
            m[-1].free = True
        q0 = add("qk", m + [[]])
        for i, x in enumerate(qr[npre:]):
            G[q0 + i].mem.append(x)
        for t in range(7):
            late.append((maxops(t), q0 + 2 * ST * (t + 1) + 6, q0 + 2 * ST * (t + 1) + (2 * ST - 4 if t < 6 else ST + 4), q0 + 15 * ST + 9))
        pa = q0 + cfg.get("arr", 3) * ST
        G[pa].valu.append(L(f"""v_lshlrev_b32 v{vACT}, 20, v0
        v_mov_b32 v{vACT+1}, 1"""))
        G[pa + 1].mem.append(L(f"""s_lshl_b32 s{sT1}, s{sW}, 10
        s_lshl_b32 s{sT2}, s{sB}, 5"""))
        G[pa + 2].mem.append(L(f"s_add_u32 s{sT1}, s{sT1}, s{sT2}") + L(f"buffer_atomic_add v{vACT+1}, v{vACT}, {SRD_D}, s{sT1} offen sc1", "arr"))
        FS = self.FS
        ta, tb = vACT + 4, vACT + 5
        sg = L(f"""v_lshrrev_b32 v{ta}, 2, v0
        v_and_b32 v{tb}, 3, v0
        v_lshl_add_u32 v{vFr}, v{ta}, 1, v{tb}
        v_mul_u32_u24 v{vFr}, {4*FS}, v{vFr}""")
        sa = L(f"""s_add_u32 s48, s{sW}, {(14 if NT == 5 else 0)*4}
        s_mul_i32 s48, s48, {FS}
        s_lshl_b32 s49, s{sH}, 2
        s_add_u32 s48, s48, s49""")
        sg += L(f"v_add_u32 v{vFr}, s48, v{vFr}")
        if NT == 5:
            sa += L(f"""s_lshr_b32 s50, s{sW}, 1
            s_add_u32 s50, s50, 112
            s_mul_i32 s50, s50, {FS}
            s_and_b32 s51, s{sW}, 1
            s_lshl_b32 s51, s51, 2
            s_add_u32 s50, s50, s51
            s_add_u32 s50, s50, s49
            s_add_u32 s50, s50, s49""")
            sg += L(f"""v_mul_u32_u24 v{ta}, {2*FS}, v{ta}
            v_add_u32 v{ta}, s50, v{ta}""")
            sg.append(L(f"""v_cmp_eq_u32 vcc, 2, v{tb}
            v_cndmask_b32 v{vFr}, v{vFr}, v{ta}, vcc"""))
        assert put_mem(G, sa, q0 + 4 * ST, q0 + 5 * ST - 2)[-1] <= q0 + 5 * ST
        late.append((sg, q0 + 5 * ST, q0 + 6 * ST, None))
        mo = maxops(7)
        for mt in range(NT):
            w = L(f"ds_max_f32 v{vMaxA}, v{vM+mt} offset:{4*mt}", "mx")
            p = q0 + 15 * ST + 4 * mt + 3 + 6
            if p < q0 + 16 * ST:
                G[p].valu.append(mo[2 * mt:2 * mt + 2]); G[p + 1].mem.append(w)
            else:
                G[q0 + 16 * ST].valu.append(mo[2 * mt:2 * mt + 2] + w)
        vNM = vT + 5
        vPk = 4
        aSUM, aONE = 40, 60
        tA = vACT

        def sm_block(j):
            out = []
            for mt in range(NT):
                regs = [vACC + ((2 * j + hh) * NT + mt) * 4 + o for hh in range(2) for o in range(4)]
                pk = vPk + 4 * ((j * NT + mt) & 1)
                fm = [I(f"v_fma_f32 v{r}, v{r}, s{sC}, v{vNM+mt}") for r in regs]
                ex = [I(f"v_exp_f32 v{r}, v{r}") for r in regs]
                cv = [I(f"v_cvt_pk_bf16_f32 v{pk+i}, v{regs[2*i]}, v{regs[2*i+1]}") for i in range(4)]
                g = [fm[0], fm[1], ex[0], ex[1], fm[2], fm[3], ex[2], ex[3], fm[4], fm[5], ex[4], ex[5], fm[6], fm[7], ex[6], cv[0], cv[1], ex[7], cv[2], cv[3]]
                off = (j * 4 * NT + mt) * 1024
                d = a(aSUM + 4 * mt, 4)
                r = vPw
                if off >= 65536:
                    off -= 40960; r = vPw2
                w = I(f"ds_write_b128 v{r}, {v(pk, 4)} offset:{off}", f"pw{j}")
                sm = I(f"{MF} {d}, {a(aONE, 4)}, {v(pk, 4)}, {'0' if j == 0 else d}")
                out.append((g, w, sm))
            return out

        pre = [self.stamp(), Ev("release", list(range(4, self.NQB))), L(f"s_mov_b32 s{sT1}, 0x3f803f80")]
        pre += [I(f"v_accvgpr_write_b32 a{aONE+i}, s{sT1}") for i in range(4)]
        pre += BAR(wait_ds("mx"))
        pre += L(f"ds_read_b128 {v(tA, 4)}, v{vMaxA}")
        if NT == 5:
            pre += L(f"ds_read_b32 v{tA+4}, v{vMaxA} offset:16")
        add("mx", [pre])
        b0 = sm_block(0)
        items = []
        for mt in range(NT):
            g, w, sm = b0[mt]
            head = [I(f"v_mul_f32 v{vNM+m2}, 0xbdb8aa3b, v{tA+m2}") for m2 in range(NT)] if mt == 0 else []
            nxt = b0[mt + 1][0][:2] if mt < NT - 1 else []
            items.append([head, g if mt == 0 else g[2:], nxt, sm, w])
        add("sm0", items)
        add("pb0", [[self.stamp(), BAR(wait_ds("pw0")), self.p_reads(0)]])
        vO = vACC - 8 * NT
        BL = 4 * ST
        pbar = BL - cfg.get("pbar", 9)
        for j in range(4):
            m = []
            for kk in range(4):
                k = 4 * j + kk
                order = None
                if k == 15:
                    order = [(2 * jj + hh, mt) for jj in range(2) for mt in range(NT) for hh in range(2)]
                m += self.gemm_step(30 + k, vO, lambda mt, k=k: a(20 * (k & 1) + 4 * mt, 4), k == 0, order)
            if j == 3:
                m.append([])
            if cfg.get("pvstamps"):
                m.append(self.stamp())
            p0 = add(f"pv{j}", m)
            for kk in range(3):
                put_mem(G, self.p_reads(4 * j + kk + 1), p0 + ST * kk, p0 + ST * kk + 2 * NT)
            if j < 3:
                nb = p0 + pbar
                G[nb].mem.append(BAR(wait_ds(f"pw{j+1}")))
                ps = put_mem(G, self.p_reads(4 * j + 4), nb, nb + NT)
                assert ps[-1] < p0 + BL
                st = []
                for g, w, sm in sm_block(j + 1):
                    st += g + [[w, sm]]
                s0 = p0 if j == 0 else prev_nb + 1
                late.append((st, s0, nb - cfg.get("pgap", 4), nb))
                prev_nb = nb
            else:
                sw = [I(f"ds_write_b32 v{vStatW}, a{aSUM+4*mt} offset:{mt*256}", "ow") for mt in range(NT)]
                put_mem(G, sw, p0 + 10, p0 + 20)
                G[p0 + 30].mem.append(L(f"s_lshl_b32 s{sT2}, s{sB}, 5") + L(f"buffer_load_dword v{vCn}, off, {SRD_D}, s{sT2} sc1", "cn"))
                fin = [[], []]
                for i in range(2 * NT):
                    jj, mt = divmod(i, NT)
                    pk = vPk + 4 * (i & 1)
                    if i >= 2 * NT - 2: pk = vACC + 60 + 4 * (i & 1)
                    g = []
                    for hh in range(2):
                        d = vO + ((2 * jj + hh) * NT + mt) * 4
                        g.append(L(f"""v_cvt_pk_bf16_f32 v{pk+2*hh}, v{d}, v{d+1}
                        v_cvt_pk_bf16_f32 v{pk+2*hh+1}, v{d+2}, v{d+3}"""))
                    w = I(f"ds_write_b128 v{vOw}, {v(pk, 4)} offset:{(jj*NT+mt)*1024}", "ow")
                    p = p0 + 3 * ST + 2 * i + 4
                    if p + 1 < p0 + BL:
                        G[p].valu.append(g[0]); G[p + 1].valu.append(g[1]); G[p + 2].mem.append(w)
                    else:
                        fin[0].append(g); fin[1].append(w)
                G[p0 + BL].valu.append(fin)

        pos = {}
        for c in range(1, 14):
            pos[c] = min(ST * c - 14, cfg["wq0"] + cfg["wqd"] * (c - 1))
        c = 14
        for name, n, lo, hi in cfg["pumps"]:
            s0, s1 = seg[name]
            for i in range(n):
                pos[c] = int(s0 + (s1 - s0) * (lo + (hi - lo) * i / n)); c += 1
        assert c == 46, c
        for c in range(2, 46):
            assert pos[c] > pos[c - 1], (c, pos[c - 1], pos[c])
        lag = cfg.get("rlag", 6)
        insm = lambda p: seg["mx"][0] <= p < seg["pb0"][1]
        dma = []
        d0 = cfg.get("d0", 10)
        p = 0
        for c in range(1 + npre_l, S):
            dma.append((p, self.load(c), None, c)); p += d0
        dma.append((p, self.load(S), "r0", S)); p += d0
        xl = self.x_loads(1)
        dma.append((p, xl, None, None)); p += (d0 * len(xl)) // 4
        lastr = 0
        for c in range(1, 46):
            r = self.read(c)
            n = len(r)
            r[0] = [wait_vm(f"c{c}"), r[0]]
            pp = max(pos[c], lastr)
            if insm(pp):
                G[pp].mem.append(r); ps = [pp]; st = pp + 1
            else:
                span = max(1, min(n, (pos[c + 1] - pp) if c < 45 else n))
                ps = put_mem(G, r, pp, pp + span)
                st = ps[-1] + lag
                if insm(st) or (pp < seg["mx"][0] < st):
                    st = min(st, seg["sm0"][0])
            lastr = ps[-1]
            if c == 1:
                st = max(st, p)
            st = max(st, dma[-1][0] + (1 if insm(st) else cfg.get("dmin", 6)))
            if c + S < 50:
                dma.append((st, self.load(c + S), f"r{c}", c + S))
        lastd = 0
        for i, (st, pairs, wt, c) in enumerate(dma):
            en = dma[i + 1][0] if i + 1 < len(dma) else min(len(G), st + 10)
            en = min(en, st + cfg.get("dspan", 40))
            items = []
            for k, (setup, ld) in enumerate(pairs):
                if setup: items.append(setup)
                items.append(([wait_ds(wt)] if (wt and k == 0) else []) + ld)
            st = max(st, lastd); en = max(en, st + 1)
            st = min(st, len(G) - 1); en = min(en, len(G))
            ps = put_mem(G, items, st, en)
            lastd = ps[-1]
            if c == 29:
                assert lastd < seg["sm0"][0]
        for name, tmp in (("qk", vACT + 8), ("pv0", 12), ("pv1", 12), ("pv2", 12), ("pv3", 12)):
            if name in cfg.get("cpf", []):
                ct = self.code_touch(tmp)
                late.append((ct[0] + ct[1], seg[name][0] + 50, seg[name][0] + 56, None))
        for (items, s0, s1, lim) in late:
            last = put_valu(G, items, s0, s1)
            assert lim is None or last < lim, (last, lim)
        if cfg.get("show"):
            for name, (s0, s1) in seg.items():
                print(name, sum(max(16, 8 + G[s].load()) for s in range(s0, s1)), " ".join(str(G[s].load()) for s in range(s0, s1)), file=sys.stderr)
        for name, fr in cfg.get("sat", []):
            G[seg[name][0] + int(fr * (seg[name][1] - seg[name][0]))].valu.append(self.stamp())
        e([g.out() for g in G])
        e(self.stamp())
        e([wait_vm("c47"), wait_ds()]); e("s_barrier")
        e([Ev("reserve", list(range(4, self.NQB)))])

        def wo_reads(j):
            kind, base = self.wo_place(j)
            out = []
            for ko in range(8):
                key = ("u", j, ko >> 2)
                for hf in range(2):
                    if kind == "R":
                        r, off = (vrToR, vrToR2)[ko >> 2], ((ko >> 1) & 1) * self.WS + (base + (ko & 1)) * 4096
                    else:
                        r, off = vrToB, ko * 4096
                    out.append(T(lambda b, ko=ko, hf=hf, r=r, off=off: f"ds_read_b64_tr_b16 {a(b+4*(ko & 3)+2*hf, 2)}, v{r} offset:{off + hf*2048}", key, f"ru{j}", rd=True))
            out[0].alloc = 8; out[8].alloc = 8
            return out

        def wo_loads(j):
            return self.load(46 + 2 * j) + self.load(47 + 2 * j)

        orr = [I(f"ds_read_b128 {a((ko*NT+mt)*4, 4)}, v{vL0} offset:{(ko*NT+mt)*1024}", "ro") for ko in range(8) for mt in range(NT)]
        w0 = wo_reads(0)
        first = []
        for ko in range(8):
            first += w0[2 * ko:2 * ko + 2] + orr[NT * ko:NT * ko + NT]
        nf = 2 * NT + 2
        e(first[:nf])
        if cfg.get("ostamp"): e(self.stamp())
        vR = vT
        tS = 236
        rs = L("\n".join(f"ds_read_b128 {v(tS+4*mt, 4)}, v{vStatR} offset:{mt*256}" for mt in range(NT)))
        rs2 = []
        for mt in range(NT):
            rs2 += L(f"""v_add_f32 v{tS+4*mt}, v{tS+4*mt}, v{tS+4*mt+1}
            v_add_f32 v{tS+4*mt+2}, v{tS+4*mt+2}, v{tS+4*mt+3}
            v_add_f32 v{tS+4*mt}, v{tS+4*mt}, v{tS+4*mt+2}
            v_rcp_f32 v{vR+mt}, v{tS+4*mt}""")

        def epi(j):
            acc = vACC + 20 * j
            pk = vACT + 12 * (j % 3)
            out = []
            for mt in range(NT):
                g = L("\n".join(f"v_mul_f32 v{acc+4*mt+i}, v{vR+mt}, v{acc+4*mt+i}" for i in range(4)))
                g += L(f"""v_cvt_pk_bf16_f32 v{pk+2*mt}, v{acc+4*mt}, v{acc+4*mt+1}
                v_cvt_pk_bf16_f32 v{pk+2*mt+1}, v{acc+4*mt+2}, v{acc+4*mt+3}""")
                if mt == 1:
                    g.append(L(f"s_mov_b32 s{sT1}, {j*8192}") + L(f"buffer_store_dwordx4 {v(pk, 4)}, v{vStA0}, {SRD_P}, s{sT1} offen {'' if j < cfg.get('xplain', 0) else 'sc1'}", f"st{j}"))
                if mt == 3:
                    g += L(f"buffer_store_dwordx4 {v(pk+4, 4)}, v{vStA1}, {SRD_P}, s{sT1} offen {'' if j < cfg.get('xplain', 0) else 'sc1'}", f"st{j}")
                if mt == 4:
                    g.append(L(f"s_mov_b32 s{sT1}, {j*2048}") + L(f"buffer_store_dwordx2 {v(pk+8, 2)}, v{vStB}, {SRD_P}, s{sT1} offen {'' if j < cfg.get('xplain', 0) else 'sc1'}", f"st{j}"))
                out.append(g)
            return out

        PS = 8 * NT
        m = []
        for j in range(7):
            acc = vACC + 20 * j
            order = [(ko, mt) for ko in range(8) for mt in range(NT)]
            if j == 6:
                order = [(ko, mt) for mt in range(NT) for ko in range(8)]
            for (ko, mt) in order:
                d = v(acc + 4 * mt, 4)
                m.append(T(lambda b, d=d, ko=ko, mt=mt: f"{MF} {d}, {a(b+4*(ko & 3), 4)}, {a((ko*NT+mt)*4, 4)}, {'0' if ko == 0 else d}", ("u", j, ko >> 2), partial=(j <= 1)))
            if j < 6:
                m[-1 - PS // 2].free = True; m[-1].free = True
        P = slots(m + [[]])
        rest = first[nf:]
        for i, x in enumerate(rest):
            p = (i * 6 * NT) // len(rest)
            assert p < NT * ((i + nf) // (NT + 2))
            P[p].mem.append(x)
        sy = [6 * NT + 2, 2 * PS - 22] + [PS * j - 24 for j in range(3, 7)]
        if NT == 4:
            sy = [6 * NT + 2, 2 * PS - 19] + [PS * j - 20 for j in range(3, 7)]
        for j in range(1, 7):
            r = wo_reads(j)
            s0 = sy[j - 1]
            P[s0].mem.append(BAR(wait_vm(f"c{47+2*j}"), wait_ds(f"ru{j-1}")))
            if j == 1:
                for i, x in enumerate(r):
                    assert s0 + 1 + i < PS + NT * (i // 2) and s0 + 1 + i < sy[1]
                    P[s0 + 1 + i].mem.append(x)
            else:
                ps = put_mem(P, r, s0 + 1, s0 + 17)
                assert ps[-1] < PS * j
        for i, x in enumerate(rs):
            P[PS + i].mem.append(x)
        lastd = 0
        for j in range(2, 7):
            st = max(lastd, 0 if j == 2 else sy[j - 3] + 1)
            en = sy[0] - 2 if j == 2 else sy[j - 2] - 1
            items = []
            for (setup, ld) in wo_loads(j):
                if setup: items.append(setup)
                items.append(ld)
            lastd = put_mem(P, items, st, en)[-1]
            assert lastd < sy[j - 1]
        f1 = lambda gs: [x for g in gs for x in g]
        vPg = 12

        done = [0]

        def prog(n):
            m = self.sigmask(done[0], n); first = done[0] == 0; done[0] = n
            chk = []
            if first:
                chk = [L(f"""v_readfirstlane_b32 s{sT2}, v{vCn}
                v_mov_b32 v{vPg}, 1
                s_cmp_ge_u32 s{sT2}, 32
                s_cbranch_scc0 L_cnt{NT}
                L_cntok{NT}:""")]
            return chk + [[wait_vm(f"st{n-1}")] + L(f"s_mov_b64 exec, {m}") +
                          L(f"buffer_store_dword v{vPg}, v{vFr}, {SRD_F}, 0 offen {self.cfg.get('fpol', 'sc1')}", "pg") + L("s_mov_b64 exec, -1")]
        pg_at = cfg.get("pg_at", {3: 2, 5: 4})
        self.prog = prog
        last = put_valu(P, rs2 + f1(epi(0)), PS + 14, 2 * PS + 12)
        for j in range(1, 6):
            s0 = max(last + 1, PS * (j + 1) + 4)
            last = put_valu(P, (prog(pg_at[j]) if j in pg_at else []) + f1(epi(j)), s0, PS * (j + 2) + 4 if j < 5 else 6 * PS + PS // 2 + 2)
        for mt, g in enumerate(epi(6)):
            if mt == 0 and 6 in pg_at:
                g = prog(pg_at[6]) + g
            s0 = max(last + 1, 6 * PS + 8 * mt + 7 + 5)
            if s0 + 3 < 7 * PS:
                last = put_valu(P, g, s0, s0 + 3)
            else:
                P[7 * PS].valu.append(g)
        dec = self.decode()
        assert put_mem(P, dec[0], 4 * PS + 2, 5 * PS - 2)[-1] <= 5 * PS
        put_valu(P, dec[1], 5 * PS, 5 * PS + 24)
        P[int(cfg.get("poll_at", 6.0) * PS)].mem.append(L(f"buffer_load_dword v{vFl}, v{vFw}, {SRD_F}, 0 offen {cfg.get('ppol', 'sc1')}", "fl"))
        if cfg.get("show"):
            print("op", sum(max(16, 8 + p.load()) for p in P), " ".join(str(p.load()) for p in P), file=sys.stderr)
        e([p.out() for p in P])
        e(self.stamp())
        self.reduce()

    def decode(self):
        NT = self.NT
        sJ, sP, sUo, sA, sBq = 48, 49, 50, 51, 52
        sc = []
        sc += L(f"""s_xor_b32 s{sA}, s{sG}, 1
        s_mul_i32 s{sA}, s{sA}, 7
        s_lshr_b32 s{sUo}, s{sA}, 4
        s_lshr_b32 s{sJ}, s{sH}, 1
        s_and_b32 s{sP}, s{sH}, 1""")
        if NT == 5:
            sc.append(L(f"""s_cmp_ge_u32 s{sH}, 14
            s_cselect_b32 s{sJ}, 0, s{sJ}
            s_cselect_b32 s{sUo}, s{sU0}, s{sUo}
            s_cselect_b32 s{sA}, 0, 1"""))
            sc += L(f"""s_mov_b32 s{sNEED}, 0xffff
            s_lshl_b32 s{sSLO}, s{sJ}, 1
            s_add_u32 s{sSLO}, s{sSLO}, s{sP}
            s_lshl_b32 s{sSLO}, s{sSLO}, 12
            s_mul_i32 s{sBq}, s{sA}, 57344
            s_add_u32 s{sSLO}, s{sSLO}, s{sBq}
            s_mul_i32 s{sOUTO}, s{sP}, {32*896}
            s_mul_i32 s{sBq}, s{sA}, {80*896}
            s_add_u32 s{sOUTO}, s{sOUTO}, s{sBq}""")
        else:
            sc += L(f"""s_add_u32 s{sJ}, s{sJ}, 1
            s_add_u32 s{sSLO}, s{sH}, 2
            s_mul_i32 s{sOUTO}, s{sP}, {32*896}
            s_sub_u32 s{sA}, s{sH}, 12
            s_lshl_b32 s{sA}, s{sA}, 1
            s_lshr_b32 s{sBq}, s{sW}, 1
            s_add_u32 s{sBq}, s{sBq}, s{sA}
            s_add_u32 s53, s{sH}, 16""")
            sc.append(L(f"""s_cmp_ge_u32 s{sH}, 12
            s_cselect_b32 s{sJ}, s{sBq}, s{sJ}
            s_cselect_b32 s{sNEED}, -1, 0xffff
            s_cselect_b32 s{sSLO}, s53, s{sSLO}
            s_cselect_b32 s{sOUTO}, {64*896}, s{sOUTO}
            s_cselect_b64 s[54:55], -1, 0"""))
            sc += L(f"""s_lshl_b32 s{sSLO}, s{sSLO}, 12""")
            sc.append(L(f"""s_cmp_eq_u32 s{sJ}, 7
            s_cselect_b32 s{sOUTO}, 0x40000000, s{sOUTO}
            s_cselect_b32 s{sNEED}, 0, s{sNEED}"""))
        sc += L(f"s_add_u32 s{sJ}, s{sJ}, s{sUo}")
        sc.append(L(f"""s_cmp_ge_u32 s{sJ}, 7
        s_cselect_b32 s{sBq}, 7, 0"""))
        sc += L(f"""s_sub_u32 s{sJ}, s{sJ}, s{sBq}
        s_lshl_b32 s{sJ}, s{sJ}, 7
        s_add_u32 s{sOUTO}, s{sOUTO}, s{sJ}
        s_lshl_b32 s{sBq}, s{sW}, 10
        s_add_u32 s{sSLO}, s{sSLO}, s{sBq}
        s_lshl_b32 s{sP}, s{sW}, 5
        s_and_b32 s{sJ}, s{sW}, 1
        s_lshl_b32 s{sJ}, s{sJ}, 6""")
        t0, t1 = vdV, vdV + 1
        va = L(f"""v_add_u32 v{vRd}, s{sSLO}, v{vL0}
        v_and_b32 v{t0}, 15, v0
        v_mul_u32_u24 v{t0}, 896, v{t0}
        v_lshrrev_b32 v{t1}, 4, v0
        v_lshl_add_u32 v{t0}, v{t1}, 3, v{t0}
        v_add_u32 v{vO0}, s{sP}, v{t0}
        v_add_u32 v{vO1}, {16*896}, v{vO0}""")
        if NT == 4:
            va += L(f"""v_and_b32 v{t0}, 7, v0
            v_mul_u32_u24 v{t0}, {2*896}, v{t0}
            v_lshrrev_b32 v{t1}, 3, v0
            v_lshl_add_u32 v{t0}, v{t1}, 3, v{t0}
            v_add_u32 v{t0}, s{sJ}, v{t0}
            v_add_u32 v{t1}, 896, v{t0}
            v_cndmask_b32 v{vO0}, v{vO0}, v{t0}, s[54:55]
            v_cndmask_b32 v{vO1}, v{vO1}, v{t1}, s[54:55]""")
        return sc, va

    def reduce(self):
        e = self.e
        cfg = self.cfg
        NT = self.NT
        D = vACC
        vPg = 12
        ld = lambda h: f"s_mov_b32 s{sT1}, {h*PART}\nbuffer_load_dwordx4 {v(D+4*h, 4)}, v{vRd}, {SRD_X}, s{sT1} offen sc1"
        e(f"""
        s_mul_i32 s{sT0}, s{sB}, {16*PART}
        s_add_u32 s24, s14, s{sT0}
        s_addc_u32 s25, s15, 0
        s_mov_b32 s26, {16*PART}
        s_mov_b32 s27, 0x20000
        """)
        fin = self.prog(7)
        e(fin[:-1])
        sig = "\n".join(x.text for x in flat(fin[-1]) if x.kind != "pseudo")
        e(f"""
        v_cmp_eq_u32 vcc, 1, v{vFl}
        s_andn2_b32 s{sT2}, s{sNEED}, vcc_lo
        s_cbranch_scc1 L_slow{NT}
        """)
        e("\n".join(ld(h) for h in range(8)))
        e(f"""
        s_waitcnt vmcnt(8)
        {sig}
        s_branch L_join{NT}
        L_slow{NT}:
        s_waitcnt vmcnt(0)
        {sig}
        s_mov_b32 s{sT0}, 0
        L_poll{NT}:
        buffer_load_dword v{vFl}, v{vFw}, {SRD_F}, 0 offen {cfg.get('ppol', 'sc1')}
        s_add_u32 s{sT0}, s{sT0}, 1
        s_waitcnt vmcnt(0)
        v_cmp_eq_u32 vcc, 1, v{vFl}
        s_cmp_ge_u32 s{sT0}, {SPIN_MAX}
        s_cbranch_scc1 L_go{NT}
        s_andn2_b32 s{sT2}, s{sNEED}, vcc_lo
        s_cbranch_scc0 L_go{NT}
        s_sleep {cfg.get('sleep', 2)}
        s_branch L_poll{NT}
        L_go{NT}:
        """)
        e([Ev("forget", None)])
        e("\n".join(ld(h) for h in range(8)))
        e(f"L_join{NT}:")
        e(self.stamp())
        e("\n".join(ld(h) for h in range(8, cfg.get('xn', 16))))
        e(f"""
        s_mul_i32 s{sT0}, s{sB}, 129024
        s_add_u32 s28, s{sOUT}, s{sT0}
        s_addc_u32 s29, s{sOUT+1}, 0
        s_mov_b32 s30, 129024
        s_mov_b32 s31, 0x20000
        s_mov_b32 s{sT2}, 0xffff0000
        """)
        acc = vACT
        for h in range(cfg.get('xn', 16)):
            for d in range(4):
                r = D + 4 * h + d
                if h == 0:
                    e(f"""v_lshlrev_b32 v{acc+2*d}, 16, v{r}
                    v_and_b32 v{acc+2*d+1}, s{sT2}, v{r}""")
                else:
                    t = acc + 8 + 2 * (d & 1)
                    e(f"""v_lshlrev_b32 v{t}, 16, v{r}
                    v_and_b32 v{t+1}, s{sT2}, v{r}
                    v_pk_add_f32 {v(acc+2*d, 2)}, {v(acc+2*d, 2)}, {v(t, 2)}""")
        e(self.stamp())
        for d in range(4):
            e(f"v_cvt_pk_bf16_f32 v{D+d}, v{acc+2*d}, v{acc+2*d+1}")
        e(f"""
        buffer_store_dwordx2 {v(D, 2)}, v{vO0}, {SRD_K}, s{sOUTO} offen
        buffer_store_dwordx2 {v(D+2, 2)}, v{vO1}, {SRD_K}, s{sOUTO} offen
        """)
        if cfg.get("stamps"):
            e([wait_vm(None)])
            e(self.stamp())
            e(f"""
            s_cmp_lg_u32 s{sW}, {cfg.get('stampwave', 0)}
            s_cbranch_scc1 L_k1_end{NT}
            s_mul_i32 s{sT0}, s2, {NSTAMP*8}
            s_add_u32 s{sT0}, s{sT0}, {STAMP_OFF}
            s_add_u32 s24, s14, s{sT0}
            s_addc_u32 s25, s15, 0
            s_mov_b32 s26, {28*8}
            s_mov_b32 s27, 0x20000
            v_lshlrev_b32 v1, 3, v0
            buffer_store_dwordx2 v[{vSt0}:{vSt1}], v1, s[24:27], 0 offen
            """)
        e(f"L_k1_end{NT}:\ns_endpgm")
        e(f"""
        L_cnt{NT}:
        s_mov_b32 s{sX8}, 0
        s_lshl_b32 s{sX8+1}, s{sB}, 5
        L_cntl{NT}:
        s_sleep 8
        buffer_load_dword v{vCn}, off, {SRD_D}, s{sX8+1} sc1
        s_add_u32 s{sX8}, s{sX8}, 1
        s_waitcnt vmcnt(0)
        v_readfirstlane_b32 s{sT2}, v{vCn}
        s_cmp_ge_u32 s{sX8}, {SPIN_MAX}
        s_cbranch_scc1 L_cntok{NT}
        s_cmp_ge_u32 s{sT2}, 32
        s_cbranch_scc1 L_cntok{NT}
        s_branch L_cntl{NT}
        L_pend{NT}:
        """)

    def sigmask(self, j0, j1):
        return hex(sum((7 if self.NT == 5 else 3) << (4 * j) for j in range(j0, j1)))

    def text(self):
        self.prologue()
        self.body()
        st = {}
        prog = self.resolve(self.p)
        kill = self.cfg.get("kill", [])

        def dead(x):
            if x.kind == "pseudo":
                return x.op == "wait_vm" and "dma" in kill and x.tag
            if "dma" in kill and x.kind == "vmem" and "lds" in x.text: return True
            if "bar" in kill and x.op == "s_barrier": return True
            if "mfma" in kill and x.kind == "mfma": return True
            if "valu" in kill and x.op in ("v_exp_f32", "v_fma_f32", "v_cvt_pk_bf16_f32", "v_max3_f32", "v_mul_f32"): return True
            if "act" in kill and x.op == "ds_read_b128" and not (x.tag or "").startswith("r"): return True

            return False
        prog = [x for x in prog if not dead(x)]
        t = finalize(prog, st)
        print(f"K1/{self.NT}:", st, "stamps", self.nstamp, file=sys.stderr)
        return t


def k1_text(cfg):
    touch = ""
    if cfg.get("htouch", 1):
        touch = f"""
        s_getpc_b64 s[92:93]
        L_pc0:
        v_and_b32 v2, 3, v0
        s_lshr_b32 s{sT1}, s2, 3
        v_lshl_add_u32 v2, v2, 7, v1
        s_lshl_b32 s{sT0}, s{sT1}, 2
        v_add_lshl_u32 v2, v2, s{sT0}, 7
        v_min_u32 v2, L_pend4-L_pc0-4, v2
        global_load_dword v255, v2, s[92:93]
        """
    head = finalize(L(f"""
    {cfg.get("clk", "s_memrealtime") + " s[100:101]" if cfg.get("stamps") else ""}
    s_cmp_ge_u32 s2, 256
    s_cbranch_scc1 L_k1_end5
    s_load_dwordx8 s[4:11], s[0:1], 0
    s_load_dwordx2 s[12:13], s[0:1], 32
    v_lshrrev_b32 v1, 6, v0
    {touch}
    s_load_dwordx2 s[14:15], s[0:1], 56
    s_load_dwordx2 s[{sOUT}:{sOUT+1}], s[0:1], 40
    s_load_dwordx2 s[84:85], s[0:1], 48
    v_and_b32 v0, 63, v0
    v_readfirstlane_b32 s{sW}, v1
    s_and_b32 s{sT0}, s2, 7
    s_lshr_b32 s{sT1}, s2, 3
    s_and_b32 s{sT2}, s{sT1}, 1
    s_lshl_b32 s{sH}, s{sT0}, 1
    s_add_u32 s{sH}, s{sH}, s{sT2}
    s_lshr_b32 s{sG}, s{sT1}, 1
    s_lshr_b32 s{sB}, s{sG}, 1
    s_bitcmp1_b32 s{sG}, 0
    s_cbranch_scc{cfg.get('leadbit', 0)} L_k1_nt4
    """))
    return head + "L_path5:\n" + K1(cfg, 5).text() + ".p2align 7\nL_k1_nt4:\nL_path4:\n" + K1(cfg, 4).text()


def gen(cfg):
    return build_file([(NAME + "_kernel", k1_text(cfg), 512, 102, 256)], [(NAME + "_kernel", 256, 256, LDS_BYTES)])


if __name__ == "__main__":
    cfg = eval(sys.argv[2]) if len(sys.argv) > 2 else {}
    open(sys.argv[1], "w").write(gen(cfg))
```
